```python
import torch

def _softmax(x, axis=-1):
    return torch.softmax(x, dim=axis)
def _gelu(x):
    return torch.nn.functional.gelu(x, approximate="tanh")
def _silu(x):
    return torch.nn.functional.silu(x)
def _sigmoid(x):
    return torch.sigmoid(x)
def _layernorm(x, axis=-1, eps=1e-5):
    m = x.mean(dim=axis, keepdim=True)
    v = x.var(dim=axis, keepdim=True, unbiased=False)
    return (x - m) / torch.sqrt(v + eps)
def _scatter_add(tgt, idx, src, axis=0):
    return tgt.clone().index_add_(axis, idx, src)
def _segment_sum(src, seg, n):
    out = torch.zeros((n,) + src.shape[1:], dtype=src.dtype)
    return out.index_add_(0, seg, src)
def _pad(x, pw):
    flat = tuple(v for pair in reversed(pw) for v in pair)
    return torch.nn.functional.pad(x, flat)

kernel_name = 'recurrent_scan__linear_kernel_hedgehog__glu_gated_reglu__prompt'

def setup_inputs():

    _w = (lambda a: (lambda t: t.to(torch.bfloat16) if t.is_floating_point() else t)(torch.as_tensor(a)))
    def _A_setup():
        B, S, D, H = 1, 2048, 512, 32
        Dh = D // H
        return {
            "x": _w((lambda *s: torch.randn(*s, dtype=torch.bfloat16) * 0.05)(B, S, D)),
            "wqkv": _w((lambda *s: torch.randn(*s, dtype=torch.bfloat16) * 0.8)(D, 3 * D)),
            "w_phi": _w((lambda *s: torch.randn(*s, dtype=torch.bfloat16) * 0.8)(H, Dh, Dh) * (Dh ** -0.5)),
            "wo": _w((lambda *s: torch.randn(*s, dtype=torch.bfloat16) * 0.8)(D, D)),
        }
    _A_in = _A_setup()

    def _B_setup():
        B, S, D, F = 1, 2048, 512, 1376
        return {
            "x": _w((lambda *s: torch.randn(*s, dtype=torch.bfloat16) * 0.05)(B, S, D)),
            "W_gate": _w((lambda *s: torch.randn(*s, dtype=torch.bfloat16) * 0.2)(D, F) * (2.0 / D) ** 0.5),
            "W_up": _w((lambda *s: torch.randn(*s, dtype=torch.bfloat16) * 0.2)(D, F) * (2.0 / D) ** 0.5),
            "W_down": _w((lambda *s: torch.randn(*s, dtype=torch.bfloat16) * 0.2)(F, D) * (1.0 / F) ** 0.5),
        }
    _B_in = _B_setup()

    return {
        "A_x": _A_in["x"],
        "A_wqkv": _A_in["wqkv"],
        "A_w_phi": _A_in["w_phi"],
        "A_wo": _A_in["wo"],
        "B_x": _B_in["x"],
        "B_W_gate": _B_in["W_gate"],
        "B_W_up": _B_in["W_up"],
        "B_W_down": _B_in["W_down"],
    }

def reference(A_x, A_wqkv, A_w_phi, A_wo, B_x, B_W_gate, B_W_up, B_W_down):
    def _A_ref(x, wqkv, w_phi, wo):
        B, S, D = x.shape
        H = 32; Dh = D // H
        qkv = (lambda x, *d: x.permute(*d))((x @ wqkv).reshape(B, S, 3, H, Dh), 2, 0, 3, 1, 4)
        q, k, v = qkv[0], qkv[1], qkv[2]
        pq = torch.einsum("bhsd,hdf->bhsf", q, w_phi)
        pk = torch.einsum("bhsd,hdf->bhsf", k, w_phi)
        phi_q = torch.concatenate([_softmax(pq, axis=-1), _softmax(-pq, axis=-1)], axis=-1)
        phi_k = torch.concatenate([_softmax(pk, axis=-1), _softmax(-pk, axis=-1)], axis=-1)
        kv = torch.einsum("bhsf,bhsd->bhfd", phi_k, v)
        z  = torch.einsum("bhsf->bhf", phi_k)
        num = torch.einsum("bhqf,bhfd->bhqd", phi_q, kv)
        den = torch.einsum("bhqf,bhf->bhq", phi_q, z)[..., None] + 1e-6
        o = num / den
        return (lambda x, *d: x.permute(*d))(o, 0, 2, 1, 3).reshape(B, S, D) @ wo

    def _B_ref(x, W_gate, W_up, W_down):
        gate = torch.einsum("bsd,df->bsf", x, W_gate)
        up = torch.einsum("bsd,df->bsf", x, W_up)
        gate = gate * (lambda x, dt: x.to(dt))(gate > 0, gate.dtype)
        h = gate * up
        return torch.einsum("bsf,fd->bsd", h, W_down)

    x = A_x
    xn = _layernorm(x, axis=-1)
    s = _A_ref(xn, A_wqkv, A_w_phi, A_wo)
    g = _silu(_B_ref(xn, B_W_gate, B_W_up, B_W_down))
    return x + s * g
```

```python
import re

def regs_of(op):
    op = op.strip()
    if op.startswith('-'): op = op[1:]
    if op.startswith('abs(') or op.startswith('|'):
        op = op.strip('|') if op.startswith('|') else op[4:-1]
    m = re.fullmatch(r'([vas])(\d+)', op)
    if m: return [(m.group(1), int(m.group(2)))]
    m = re.fullmatch(r'([vas])\[(\d+):(\d+)\]', op)
    if m: return [(m.group(1), i) for i in range(int(m.group(2)), int(m.group(3))+1)]
    if op == 'vcc': return [('vcc', 0)]
    if op == 'exec': return [('exec', 0)]
    if op == 'm0': return [('m0', 0)]
    if op == 'scc': return [('scc', 0)]
    return []

TRANS = ('v_exp_f32', 'v_log_f32', 'v_rcp_f32', 'v_rsq_f32', 'v_sqrt_f32', 'v_sin_f32', 'v_cos_f32')

class Ins:
    __slots__ = ('text', 'kind', 'defs', 'uses', 'op', 'tag', 'meta', 'srcc', 'wide', 'sdefs')
    def __init__(self, text, kind, defs=(), uses=(), op='', tag=None, meta=None):
        self.text = text; self.kind = kind; self.defs = list(defs); self.uses = list(uses)
        self.op = op; self.tag = tag; self.meta = meta; self.srcc = []; self.wide = False
    def __repr__(self): return self.text

def make(op, *ops, mods='', tag=None):
    ops = [str(o) for o in ops]
    text = op + (' ' + ', '.join(ops) if ops else '') + (' ' + mods if mods else '')
    R = regs_of
    def U(l):
        out = []
        for o in l: out += R(o)
        return out
    if op.startswith('v_mfma'):
        i = Ins(text, 'mfma', R(ops[0]), U(ops[1:4]), op, tag)
        i.srcc = R(ops[3]); i.meta = dict(a=R(ops[1]), b=R(ops[2]), c=R(ops[3]), passes=(8 if '32x32' in op else 4))
        return i
    if op.startswith('v_cmp'):
        return Ins(text, 'valu', R(ops[0]), U(ops[1:]), op, tag)
    if op in ('v_readfirstlane_b32', 'v_readlane_b32'):
        return Ins(text, 'readlane', R(ops[0]), U(ops[1:]), op, tag)
    if op == 'v_writelane_b32':
        return Ins(text, 'valu', R(ops[0]), U(ops), op, tag)
    if op.startswith('v_permlane'):
        return Ins(text, 'permlane', U(ops), U(ops), op, tag)
    if op.startswith('v_dot2c') :
        return Ins(text, 'dot', R(ops[0]), U(ops), op, tag)
    if op.startswith('v_dot2'):
        return Ins(text, 'dot', R(ops[0]), U(ops[1:]), op, tag)
    if op in ('v_fmac_f32', 'v_pk_fmac_f16'):
        return Ins(text, 'valu', R(ops[0]), U(ops), op, tag)
    if op.startswith('v_add_co') or op.startswith('v_sub_co') or op.startswith('v_addc_co'):
        return Ins(text, 'valu', U(ops[:2]), U(ops[2:]), op, tag)
    if op.startswith('v_'):
        kind = 'trans' if op in TRANS else 'valu'
        i = Ins(text, kind, R(ops[0]), U(ops[1:]), op, tag)
        if 'row_' in mods or 'quad_perm' in mods or 'dpp' in op: i.meta = 'dpp'
        return i
    if op.startswith('ds_read'):
        return Ins(text, 'ds_read', R(ops[0]), U(ops[1:]), op, tag)
    if op.startswith('ds_write') or op.startswith('ds_add'):
        i = Ins(text, 'ds_write', [], U(ops), op, tag)
        i.wide = ('b128' in op or 'b96' in op); i.meta = U(ops[1:])
        return i
    if op.startswith('buffer_load'):
        if ' lds' in (' ' + mods):
            return Ins(text, 'dma', [], U(ops) + [('m0', 0)], op, tag)
        i = Ins(text, 'vload', R(ops[0]), U(ops[1:]), op, tag)
        if 'd16' in op: i.uses += R(ops[0])
        return i
    if op.startswith('buffer_store'):
        i = Ins(text, 'vstore', [], U(ops), op, tag)
        i.wide = ('x4' in op or 'x3' in op); i.meta = R(ops[0])
        return i
    if op.startswith('s_load'):
        return Ins(text, 'smem', R(ops[0]), U(ops[1:]), op, tag)
    if op.startswith('s_cmp') or op.startswith('s_bitcmp'):
        return Ins(text, 'salu', [('scc', 0)], U(ops), op, tag)
    if op in ('s_barrier',): return Ins(text, 'barrier', op=op, tag=tag)
    if op in ('s_nop',): return Ins(text, 'nop', op=op, meta=int(ops[0]))
    if op in ('s_setprio', 's_sleep', 's_endpgm'): return Ins(text, 'misc', op=op)
    if op.startswith('s_cbranch') or op == 's_branch': return Ins(text, 'branch', [], [('scc',0)], op, tag)
    if op.startswith('s_cselect'):
        return Ins(text, 'salu', R(ops[0]), U(ops[1:]) + [('scc',0)], op, tag)
    if op.startswith('s_and_saveexec') or op.startswith('s_or_saveexec'):
        return Ins(text, 'salu', R(ops[0]) + [('exec',0), ('scc',0)], U(ops[1:]) + [('exec',0)], op, tag)
    if op.startswith('s_memtime') or op.startswith('s_memrealtime'):
        return Ins(text, 'smem', R(ops[0]), [], op, tag)
    if op.startswith('s_'):
        d = R(ops[0])
        if not op.startswith('s_mov') and not op.startswith('s_getreg'): d = d + [('scc', 0)]
        u = U(ops[1:])
        if op in ('s_addc_u32', 's_subb_u32'): u += [('scc', 0)]
        if op in ('s_addk_i32', 's_mulk_i32'): u += R(ops[0])
        return Ins(text, 'salu', d, u, op, tag)
    raise ValueError('unknown op ' + op)

class Prog:
    def __init__(self):
        self.ins = []
    def __call__(self, op, *ops, mods='', tag=None):
        i = make(op, *ops, mods=mods, tag=tag); self.ins.append(i); return i
    def add(self, i): self.ins.append(i)
    def extend(self, p): self.ins.extend(p.ins if isinstance(p, Prog) else p)
    def label(self, name): self.ins.append(Ins(name + ':', 'label'))
    def comment(self, s): self.ins.append(Ins('; ' + s, 'comment'))
    def wait_vm(self, tag):
        self.ins.append(Ins('', 'wait_vm', tag=tag))
    def wait_lgkm(self, tag):
        self.ins.append(Ins('', 'wait_lgkm', tag=tag))
    def wait_all(self, vm=True, lgkm=True):
        self.ins.append(Ins('', 'wait_all', meta=(vm, lgkm)))
    def raw(self, text, drains_vm=False, drains_lgkm=False, defs=(), uses=(), states=1):
        d = []; u = []
        for o in defs: d += regs_of(o)
        for o in uses: u += regs_of(o)
        self.ins.append(Ins(text, 'raw', d, u, meta=(drains_vm, drains_lgkm, states)))

VM_MAX = 63
LG_MAX = 15

def finalize(prog, verbose=False):
    out = []
    t = 0
    last_w = {}
    last_cread = {}
    last_wide_store = {}
    vmq = []
    lgq = []
    pend_vm = {}
    pend_lg = {}
    stats = dict(nops=0, waits=0, n=0)
    def emit(i):
        nonlocal t
        out.append(i)
        if i.kind in ('label', 'comment'): return
        stats['n'] += 1
        t += (i.meta + 1) if i.kind == 'nop' else 1
    def do_wait(vm=None, lg=None):
        nonlocal vmq, lgq
        parts = []
        if vm is not None and vm < len(vmq):
            n = min(vm, VM_MAX)
            parts.append('vmcnt(%d)' % n)
            done = vmq[:len(vmq)-n] if n else vmq[:]
            vmq = vmq[len(vmq)-n:] if n else []
            for d in done:
                for r in d.defs:
                    if pend_vm.get(r) is d: del pend_vm[r]
        if lg is not None and lg < len(lgq):
            if any(x.kind == 'smem' for x in lgq): lg = 0
            n = min(lg, LG_MAX)
            parts.append('lgkmcnt(%d)' % n)
            done = lgq[:len(lgq)-n] if n else lgq[:]
            lgq = lgq[len(lgq)-n:] if n else []
            for d in done:
                for r in d.defs:
                    if pend_lg.get(r) is d: del pend_lg[r]
        if parts:
            emit(Ins('s_waitcnt ' + ' '.join(parts), 'wait')); stats['waits'] += 1
    def idx_after(q, ins):
        for k in range(len(q)-1, -1, -1):
            if q[k] is ins: return len(q) - 1 - k
        return None
    for i in prog.ins:
        k = i.kind
        if k in ('label', 'comment'):
            emit(i); continue
        if k == 'wait_vm':
            j = None
            for x in range(len(vmq)-1, -1, -1):
                if vmq[x].tag == i.tag: j = len(vmq) - 1 - x; break
            if j is not None: do_wait(vm=j)
            continue
        if k == 'wait_lgkm':
            j = None
            for x in range(len(lgq)-1, -1, -1):
                if lgq[x].tag == i.tag: j = len(lgq) - 1 - x; break
            if j is not None: do_wait(lg=j)
            continue
        if k == 'wait_all':
            do_wait(vm=0 if i.meta[0] else None, lg=0 if i.meta[1] else None)
            continue
        need_vm = None; need_lg = None
        for r in i.uses + i.defs:
            if r in pend_vm:
                n = idx_after(vmq, pend_vm[r])
                if n is not None:
                    if not (k == 'vload' and r in i.defs and r not in i.uses):
                        need_vm = n if need_vm is None else min(need_vm, n)
            if r in pend_lg:
                n = idx_after(lgq, pend_lg[r])
                if n is not None:
                    if not (k == 'ds_read' and r in i.defs and r not in i.uses and pend_lg[r].kind == 'ds_read'):
                        need_lg = n if need_lg is None else min(need_lg, n)
        if need_vm is not None or need_lg is not None:
            do_wait(vm=need_vm, lg=need_lg)
        req = 0
        def dist(tp): return t - tp - 1
        def need(tp, n):
            nonlocal req
            req = max(req, n - dist(tp))
        isvalu = k in ('valu', 'trans', 'dot', 'permlane', 'readlane')
        for r in i.uses:
            w = last_w.get(r)
            if w is None: continue
            tp, wk, wi = w
            if wk == 'mfma':
                p = wi.meta['passes']
                if k == 'mfma':
                    if r in i.meta['a'] or r in i.meta['b']:
                        need(tp, 12 if p == 8 else 8)
                    if r in i.meta['c']:
                        if wi.defs == i.meta['c'] and wi.op == i.op: pass
                        else: need(tp, 10 if p == 8 else 6)
                elif isvalu or k in ('vstore', 'ds_write', 'ds_read', 'vload', 'dma', 'raw'):
                    need(tp, 12 if p == 8 else 8)
            elif wk in ('valu', 'trans', 'dot', 'permlane', 'readlane'):
                if r[0] in ('v', 'a'):
                    if k == 'mfma': need(tp, 2)
                    if k == 'permlane': need(tp, 2)
                    if k == 'readlane': need(tp, 1)
                    if i.meta == 'dpp': need(tp, 2)
                    if wk == 'trans' and isvalu and k != 'trans': need(tp, 1)
                    if wk == 'trans' and k in ('vstore', 'ds_write', 'mfma'): need(tp, 2)
                    if wk == 'dot':
                        if k == 'dot' and i.op == wi.op and r in i.defs: pass
                        else: need(tp, 3)
                else:
                    if isvalu: need(tp, 4 if i.op in ('v_readlane_b32', 'v_writelane_b32') else 2)
                    if k in ('vload', 'vstore', 'dma'): need(tp, 5)
                    if k in ('salu', 'smem', 'branch'): need(tp, 4)
                    if k == 'raw': need(tp, 5)
            elif wk == 'salu':
                if r == ('m0', 0) and k == 'dma': need(tp, 1)
        for r in i.defs:
            w = last_w.get(r)
            if w is not None:
                tp, wk, wi = w
                if wk == 'mfma' and k != 'mfma':
                    need(tp, 12 if wi.meta['passes'] == 8 else 8)
                if wk == 'mfma' and k == 'mfma' and not (wi.defs == i.defs and i.meta['c'] == i.defs):
                    need(tp, 10 if wi.meta['passes'] == 8 else 6)
                if wk == 'dot' and not (k == 'dot' and i.op == wi.op): need(tp, 3)
            if isvalu or k in ('raw',):
                if r in last_cread: need(last_cread[r], 7)
                if r in last_wide_store: need(last_wide_store[r], 2)
        while req > 0:
            n = min(req, 16)
            emit(Ins('s_nop %d' % (n-1), 'nop', meta=n-1)); stats['nops'] += 1
            req -= n
        tp = t
        emit(i)
        if k == 'raw':
            dv, dl, states = i.meta
            t += states - 1
            if dv: vmq = []; pend_vm.clear()
            if dl: lgq = []; pend_lg.clear()
            for r in i.defs: last_w[r] = (t - 1, 'valu' if r[0] in ('v','a') else 'salu', i)
            continue
        for r in i.defs:
            last_w[r] = (tp, k, i)
        if k == 'mfma' and i.srcc != i.defs:
            for r in i.srcc: last_cread[r] = tp
        if k in ('vstore', 'ds_write') and i.wide:
            for r in i.meta: last_wide_store[r] = tp
        if k in ('vload', 'vstore', 'dma'):
            vmq.append(i)
            for r in i.defs: pend_vm[r] = i
        if k in ('ds_read', 'ds_write', 'smem'):
            lgq.append(i)
            for r in i.defs: pend_lg[r] = i
    if verbose: print(stats)
    return out, stats

def render(ins):
    lines = []
    for i in ins:
        if i.kind == 'label': lines.append(i.text)
        elif i.text: lines.append('  ' + i.text)
    return '\n'.join(lines) + '\n'
```

```python
import sys, os
sys.path.insert(0, os.path.dirname(os.path.abspath(__file__)))
from asmlib import *

NAME = 'recurrent_scan__linear_kernel_hedgehog__glu_gated_reglu__prompt'
KNAME = NAME + '_kernel'

WS_TAG = 0
WS_FKV = 0x1000
WS_FHO = 0x2000
WS_KVP = 0x10000
KVP_PITCH = 4608
WS_O   = 0x200000
WS_H   = 0x400000
WS_END = 0x400000 + 64*86*1024
WS_DBG = 0x1000000
TAG_INC = 0x9E3779B9
OOB = 0x40000000

S_X, S_WQKV, S_WG, S_WU, S_WS, S_WPHI, S_WD, S_WO, S_OUT = 8, 12, 16, 20, 24, 28, 32, 36, 40
def srd(n): return 's[%d:%d]' % (n, n+3)
s_w, s_r, s_c, s_tag, s_reg = 's44', 's45', 's46', 's47', 's48'
s_t0, s_t1, s_t2, s_t3 = 's49', 's50', 's51', 's52'
s_u0, s_nu = 's53', 's54'
s_i, s_j = 's55', 's56'
s_tb = 's57'
s_ones = 's58'
s_a0, s_a1, s_wk = 's59', 's60', 's61'
s_e0, s_e1 = 's62', 's63'
S_USE = 's[64:65]'
S_HI = 's[66:67]'
s_cnt = 's68'
S_M0, S_M1 = 's[70:71]', 's[72:73]'
REGION = 40960
SLOT_E = 4
def slot_off(slot): return slot*8192

v_lane = 'v1'
vW = ['v2', 'v3', 'v4']
vwq = ['v5', 'v6', 'v7', 'v8']
vwg = ['v9', 'v10', 'v11', 'v12']
v_l16 = 'v13'
v_rstd, v_c1, v_r2 = 'v14', 'v15', 'v16'
XB = 128
def xf(s): return 'v[%d:%d]' % (XB+4*s, XB+4*s+3)
def V(a, n=1): return 'v%d' % a if n == 1 else 'v[%d:%d]' % (a, a+n-1)
def A(a, n=1): return 'a%d' % a if n == 1 else 'a[%d:%d]' % (a, a+n-1)
A_W = 0
A_E1, A_E2, A_PH1, A_PH2, A_ONE = 16, 20, 24, 28, 32
MF = 'v_mfma_f32_32x32x16_bf16'

class Cfg:
    stop = None
    dbg = False
    dumps = []

def dump_regs(p, cfg, regs, idx, tmp='v17'):
    p.comment('debug dump')
    p('s_lshl_b32', s_t0, 's2', 2); p('s_add_u32', s_t0, s_t0, s_w)
    p('s_lshl_b32', s_t0, s_t0, 16)
    p('s_add_u32', s_t0, s_t0, WS_DBG + idx*256)
    p('v_lshlrev_b32', tmp, 2, v_lane)
    for k, r in enumerate(regs):
        if r[0] == 'a':
            p('v_accvgpr_read_b32', 'v18', r); r = 'v18'
        if k and k % 16 == 0: p('s_add_u32', s_t0, s_t0, 4096)
        p('buffer_store_dword', r, tmp, srd(S_WS), s_t0, mods='offen offset:%d' % ((k % 16)*256))
        if r == 'v18': p.wait_all()
    p.wait_all()

def prologue(p, cfg):
    p('s_cmp_ge_u32', 's2', 256)
    p('s_cbranch_scc1', 'L_end')
    for sr, off in ((S_X, 0), (S_WQKV, 8), (S_WPHI, 16), (S_WO, 24), (S_WG, 40), (S_WU, 48), (S_WD, 56), (S_OUT, 64), (S_WS, 80)):
        p('s_load_dwordx2', 's[%d:%d]' % (sr, sr+1), 's[0:1]', off)
    p('v_and_b32', v_lane, 63, 'v0')
    p('v_lshrrev_b32', 'v17', 6, 'v0')
    p('v_readfirstlane_b32', s_w, 'v17')
    sizes = {S_X: 2097152, S_WQKV: 1572864, S_WPHI: 16384, S_WO: 524288, S_WG: 1409024, S_WU: 1409024, S_WD: 1409024,
             S_OUT: 2097152, S_WS: (0x6000000 if cfg.dbg else WS_END)}
    for sr, sz in sizes.items():
        p('s_mov_b32', 's%d' % (sr+2), sz); p('s_mov_b32', 's%d' % (sr+3), '0x00020000')
    p('s_and_b32', s_t0, 's2', 7)
    p('s_lshr_b32', s_t1, 's2', 3)
    p('s_and_b32', s_t2, s_t0, 1); p('s_lshl_b32', s_t2, s_t2, 3)
    p('s_lshr_b32', s_t3, s_t1, 2); p('s_add_u32', s_r, s_t2, s_t3)
    p('s_lshr_b32', s_t2, s_t0, 1); p('s_lshl_b32', s_t2, s_t2, 2)
    p('s_and_b32', s_t3, s_t1, 3); p('s_add_u32', s_c, s_t2, s_t3)
    p('s_lshl_b32', s_t2, s_t0, 2); p('s_lshr_b32', s_t3, s_t1, 3); p('s_add_u32', s_i, s_t2, s_t3)
    p('s_and_b32', s_j, s_t1, 7)
    p('s_mul_i32', s_t2, s_c, 3); p('s_lshl_b32', s_t3, s_c, 1); p('s_add_u32', s_t3, s_t3, 11)
    p('s_cmp_lt_u32', s_c, 11)
    p('s_cselect_b32', s_u0, s_t2, s_t3); p('s_cselect_b32', s_nu, 3, 2)
    p('s_mul_i32', s_reg, s_w, REGION)
    p('s_lshl_b32', s_tb, s_r, 2); p('s_add_u32', s_tb, s_tb, s_w)
    p('s_mov_b32', s_ones, '0x3f803f80')
    p('s_mov_b32', 's64', '0x0000ffff'); p('s_mov_b32', 's65', '0xffff0000')
    p('s_mov_b32', 's66', 0); p('s_mov_b32', 's67', -1)
    p.wait_all(vm=False)
    p('s_load_dword', s_tag, 's[%d:%d]' % (S_WS, S_WS+1), WS_TAG)

def x_dma(p, cfg):
    T = 'v21'
    p('v_lshrrev_b32', 'v22', 3, v_lane)
    p('v_lshrrev_b32', 'v23', 4, v_lane)
    p('v_and_b32', 'v24', 7, v_lane)
    for a in range(4):
        p('v_or_b32', T, 4*(a & 1), 'v23')
        p('v_xor_b32', T, 'v24', T)
        p('v_lshlrev_b32', T, 4, T)
        p('v_lshl_add_u32', T, 'v22', 10, T)
        p('v_add_u32', V(17+a), a*7168, T)
    p('s_lshl_b32', s_t0, s_tb, 15)
    for q in range(8):
        p('s_add_u32', 'm0', s_reg, q*4096)
        p('s_add_u32', s_t1, s_t0, q*128)
        for a in range(4):
            p('buffer_load_dwordx4', V(17+a), srd(S_X), s_t1, mods='offen offset:%d lds' % (a*1024), tag='x%d' % q)

TILES = [
    ('k', 'qkv', SLOT_E), ('v', 'qkv', 0), ('q', 'qkv', 1),
    ('g0', 'g', 2), ('u0', 'u', 3), ('g1', 'g', 0), ('u1', 'u', 1), ('g2', 'g', 2), ('u2', 'u', 3)]

def w_addr_setup(p):
    p('v_lshrrev_b32', 'v22', 2, v_lane); p('v_and_b32', 'v23', 3, v_lane); p('v_lshlrev_b32', 'v23', 4, 'v23')
    for regs, pitch in ((vwq, 3072), (vwg, 2752)):
        p('s_mov_b32', s_t0, pitch)
        p('v_mul_lo_u32', 'v21', 'v22', s_t0)
        p('v_add_u32', regs[0], 'v21', 'v23')
        for a in range(1, 4):
            p('v_add_u32', regs[a], a*(64*pitch - 1024), regs[0])
    p('v_and_b32', 'v21', 15, v_lane); p('v_lshrrev_b32', 'v21', 2, 'v21'); p('v_lshlrev_b32', 'v21', 6, 'v21')
    p('v_and_b32', 'v22', 3, v_lane); p('v_lshl_add_u32', 'v21', 'v22', 3, 'v21')
    p('v_bfe_u32', 'v22', v_lane, 4, 1); p('v_lshl_add_u32', 'v21', 'v22', 5, 'v21')
    p('v_lshrrev_b32', 'v22', 5, v_lane); p('v_lshl_add_u32', vW[0], 'v22', 9, 'v21')
    p('v_add_u32', vW[1], 65536, vW[0]); p('v_add_u32', vW[2], 131072, vW[0])
    p('v_lshlrev_b32', v_l16, 4, v_lane)

def w_dma(p, T):
    name, mat, slot = TILES[T]
    pitch = 3072 if mat == 'qkv' else 2752
    regs = vwq if mat == 'qkv' else vwg
    sr = {'qkv': S_WQKV, 'g': S_WG, 'u': S_WU}[mat]
    p('s_mul_i32', s_t2, s_w, 16*pitch)
    if mat == 'qkv':
        p('s_lshl_b32', s_t3, s_c, 6)
        p('s_add_u32', s_t2, s_t2, s_t3)
        p('s_add_u32', s_t2, s_t2, {'q': 0, 'k': 1024, 'v': 2048}[name])
    else:
        un = int(name[1])
        p('s_add_u32', s_t3, s_u0, un); p('s_lshl_b32', s_t3, s_t3, 6)
        p('s_add_u32', s_t2, s_t2, s_t3)
        if un == 2:
            p('s_cmp_lt_u32', s_nu, 3); p('s_cselect_b32', s_t3, OOB, 0); p('s_add_u32', s_t2, s_t2, s_t3)
    for g in range(2):
        p('s_add_u32', 'm0', s_reg, slot_off(slot) + g*4096)
        if g: p('s_add_u32', s_t2, s_t2, 256*pitch)
        for a in range(4):
            p('buffer_load_dwordx4', regs[a], srd(sr), s_t2, mods='offen offset:%d lds' % (a*1024), tag='w%d' % T)

def w_read(p, T, s, buf):
    slot = TILES[T][2]
    addr = (s & 3)*REGION + slot_off(slot) + (s >> 2)*1024
    for rho in range(2):
        a = addr + rho*256
        base = vW[a >> 16]
        p('ds_read_b64_tr_b16', A(A_W + 4*buf + 2*rho, 2), base, mods='offset:%d' % (a & 0xffff))

def onehot(p, dst_a, valid_mask, vjm, tmp0, tmp1):
    p('v_and_b32', tmp0, 1, vjm); p('v_lshlrev_b32', tmp0, 4, tmp0)
    p('v_mov_b32', tmp1, '0x3f80'); p('v_lshlrev_b32', tmp0, tmp0, tmp1)
    p('v_cndmask_b32', tmp0, 0, tmp0, valid_mask)
    p('v_lshrrev_b32', tmp1, 1, vjm)
    for i in range(4):
        p('v_cmp_eq_u32', 'vcc', i, tmp1)
        p('v_cndmask_b32', 'v27', 0, tmp0, 'vcc')
        p('v_accvgpr_write_b32', A(dst_a+i), 'v27')

def const_setup(p):
    p('v_and_b32', 'v21', 31, v_lane)
    p('v_lshrrev_b32', 'v22', 5, v_lane)
    p('v_bfe_u32', 'v23', 'v21', 2, 1)
    p('v_and_b32', 'v24', 3, 'v21'); p('v_bfe_u32', 'v25', 'v21', 3, 1); p('v_lshl_add_u32', 'v24', 'v25', 2, 'v24')
    p('v_cmp_eq_u32', S_M0, 'v23', 'v22')
    p('v_cmp_gt_u32', S_M1, 16, 'v21')
    p('s_and_b64', 's[74:75]', S_M0, S_M1)
    p('s_andn2_b64', 's[76:77]', S_M0, S_M1)
    onehot(p, A_E1, 's[74:75]', 'v24', 'v25', 'v26')
    onehot(p, A_E2, 's[76:77]', 'v24', 'v25', 'v26')
    p('v_mov_b32', 'v25', s_ones); p('v_cndmask_b32', 'v25', 'v25', 0, S_HI)
    p('v_accvgpr_write_b32', A(A_ONE), 'v25')
    for i in range(1, 4): p('v_accvgpr_write_b32', A(A_ONE+i), 0)
    p('v_and_b32', 'v24', 3, 'v21'); p('v_lshrrev_b32', 'v25', 3, 'v21'); p('v_lshl_add_u32', 'v24', 'v25', 2, 'v24')
    p('v_lshlrev_b32', 'v24', 1, 'v24')
    p('v_lshl_add_u32', 'v24', 'v22', 7, 'v24')
    p('v_lshl_add_u32', 'v24', 'v23', 9, 'v24')
    p('s_lshl_b32', s_t0, s_c, 10)
    for j in range(8):
        p('buffer_load_ushort', V(32+j), 'v24', srd(S_WPHI), s_t0, mods='offen offset:%d' % (((j & 3) + 8*(j >> 2))*32))
    p('v_cmp_eq_u32', S_M0, 0, 'v23')

def phi_pack(p):
    for i in range(4):
        p('v_lshl_or_b32', V(32+2*i), V(33+2*i), 16, V(32+2*i))
        p('v_cndmask_b32', 'v25', 0, V(32+2*i), S_M0)
        p('v_cndmask_b32', 'v26', V(32+2*i), 0, S_M0)
        p('v_accvgpr_write_b32', A(A_PH1+i), 'v25')
        p('v_accvgpr_write_b32', A(A_PH2+i), 'v26')

def x_read_stats(p, cfg):
    p('v_and_b32', 'v21', 31, v_lane)
    p('v_lshrrev_b32', 'v22', 5, v_lane)
    p('v_bfe_u32', 'v23', 'v21', 1, 3)
    p('v_xor_b32', 'v23', 'v22', 'v23')
    p('v_lshlrev_b32', 'v24', 7, 'v21'); p('v_add_u32', 'v24', s_reg, 'v24')
    for sp in range(4):
        p('v_xor_b32', 'v25', 2*sp, 'v23'); p('v_lshl_add_u32', V(17+sp), 'v25', 4, 'v24')
    p('v_mov_b32', 'v28', 0); p('v_mov_b32', 'v29', 0); p('v_mov_b32', 'v30', 0); p('v_mov_b32', 'v31', 0)
    def stats(q):
        for sp in range(4):
            for k in range(4):
                r = V(XB + 16*q + 4*sp + k)
                p('v_dot2c_f32_bf16', 'v28' if k & 1 else 'v29', s_ones, r)
                p('v_dot2c_f32_bf16', 'v30' if k & 1 else 'v31', r, r)
    for q in range(8):
        p.wait_vm('x%d' % q)
        for sp in range(4):
            p('ds_read_b128', xf(4*q+sp), V(17+sp), mods='offset:%d' % (q*4096))
        if q: stats(q-1)
    stats(7)

def ln_finish(p):
    p('v_add_f32', 'v28', 'v28', 'v29'); p('v_add_f32', 'v30', 'v30', 'v31')
    p('v_mov_b32', 'v29', 'v28'); p('v_mov_b32', 'v31', 'v30')
    p('v_permlane32_swap_b32', 'v28', 'v29'); p('v_permlane32_swap_b32', 'v30', 'v31')
    p('v_add_f32', 'v28', 'v28', 'v29'); p('v_add_f32', 'v30', 'v30', 'v31')
    p('s_mov_b32', s_t0, '0x3b000000')
    p('v_mul_f32', 'v28', s_t0, 'v28')
    p('v_mul_f32', 'v30', s_t0, 'v30')
    p('v_fma_f32', 'v30', '-v28', 'v28', 'v30')
    p('v_max_f32', 'v30', 0, 'v30')
    p('v_add_f32', 'v30', '0x3727c5ac', 'v30')
    p('v_rsq_f32', v_rstd, 'v30')
    for i in range(16): p('v_sub_f32', V(32+i), 0, 'v28')
    p('v_mul_f32', v_c1, '0x3fb8aa3b', v_rstd)
    p('v_mul_f32', v_r2, v_rstd, v_rstd)

def center(p):
    D = [48, 64, 80]
    def mm(pp):
        d = V(D[pp % 3], 16)
        p(MF, d, A(A_E1, 4), xf(2*pp), V(32, 16))
        p(MF, d, A(A_E2, 4), xf(2*pp+1), d)
    def cv(pp):
        d = D[pp % 3]
        for i in range(8):
            p('v_cvt_pk_bf16_f32', V(XB + 8*pp + i), V(d+2*i), V(d+2*i+1))
    mm(0); mm(1)
    for pp in range(16):
        if pp + 2 < 16: mm(pp+2)
        cv(pp)

def tile_passes(p, tiles, accs, dma_after=None, dist=2):
    seq = [(T, s) for T in tiles for s in range(32)]
    nb = dist + 1
    def issue(n):
        T, s = seq[n]
        if s == 0:
            p.wait_vm('w%d' % T)
            p('s_barrier')
            for T2 in (dma_after or {}).get(T, []): w_dma(p, T2)
        w_read(p, T, s, n % nb)
    for n in range(dist): issue(n)
    for n, (T, s) in enumerate(seq):
        w = A(A_W + 4*(n % nb), 4)
        acc = accs[T]
        c = '0' if s == 0 else acc
        if TILES[T][0] == 'v': p(MF, acc, xf(s), w, c)
        else: p(MF, acc, w, xf(s), c)
        if n + dist < len(seq): issue(n + dist)

def softmax_phi(p, acc, P, E, out):
    K = E
    for i in range(8): p('v_cvt_pk_bf16_f32', V(K+i), V(acc+2*i), V(acc+2*i+1))
    p(MF, V(P, 16), A(A_PH1, 4), V(K, 4), '0')
    p(MF, V(P, 16), A(A_PH2, 4), V(K+4, 4), V(P, 16))
    mx, mn = 'v17', 'v18'
    p('v_max3_f32', mx, V(P), V(P+1), V(P+2)); p('v_min3_f32', mn, V(P), V(P+1), V(P+2))
    for i in range(3, 15, 2):
        p('v_max3_f32', mx, mx, V(P+i), V(P+i+1)); p('v_min3_f32', mn, mn, V(P+i), V(P+i+1))
    p('v_max_f32', mx, mx, V(P+15)); p('v_min_f32', mn, mn, V(P+15))
    p('v_mul_f32', mx, mx, v_c1); p('v_mul_f32', mn, mn, v_c1)
    for r in range(16):
        p('v_fma_f32', V(E+r), V(P+r), v_c1, '-'+mx)
        p('v_fma_f32', V(E+16+r), '-'+V(P+r), v_c1, mn)
    for r in range(32): p('v_exp_f32', V(E+r), V(E+r))
    sp, sn = 'v19', 'v20'
    p('v_add_f32', sp, V(E), V(E+1)); p('v_add_f32', sn, V(E+16), V(E+17))
    for r in range(2, 16):
        p('v_add_f32', sp, sp, V(E+r)); p('v_add_f32', sn, sn, V(E+16+r))
    p('v_rcp_f32', sp, sp); p('v_rcp_f32', sn, sn)
    for r in range(16):
        p('v_mul_f32', V(E+r), V(E+r), sp); p('v_mul_f32', V(E+16+r), V(E+16+r), sn)
    for i in range(16): p('v_cvt_pk_bf16_f32', V(out+i), V(E+2*i), V(E+2*i+1))

KA, VA, QA = 32, 48, 64

def k_epilogue(p, cfg):
    P, E, PHI = 64, 80, 112
    softmax_phi(p, KA, P, E, PHI)
    p('v_cvt_pk_bf16_f32', 'v24', v_rstd, v_rstd)
    p('v_lshlrev_b32', 'v25', 16, 'v24'); p('v_sub_f32', 'v25', v_rstd, 'v25')
    p('v_cvt_pk_bf16_f32', 'v24', v_rstd, 'v25')
    p('v_mov_b32', 'v25', 0); p('v_mov_b32', 'v26', 0); p('v_mov_b32', 'v27', 0)
    RT = 32
    p(MF, V(RT, 16), 'v[24:27]', A(A_ONE, 4), '0')
    TP, TN = 64, 80
    p(MF, V(TP, 16), V(PHI, 4), A(A_E1, 4), '0');      p(MF, V(TN, 16), V(PHI+8, 4), A(A_E1, 4), '0')
    p(MF, V(TP, 16), V(PHI+4, 4), A(A_E2, 4), V(TP, 16)); p(MF, V(TN, 16), V(PHI+12, 4), A(A_E2, 4), V(TN, 16))
    for r in range(16): p('v_mul_f32', V(VA+r), V(VA+r), V(RT+r))
    VP = 96
    for i in range(8): p('v_cvt_pk_bf16_f32', V(VP+i), V(VA+2*i), V(VA+2*i+1))
    TPK = 104
    for i in range(8): p('v_cvt_pk_bf16_f32', V(TPK+i), V(TP+2*i), V(TP+2*i+1))
    for i in range(8): p('v_cvt_pk_bf16_f32', V(TPK+8+i), V(TN+2*i), V(TN+2*i+1))
    DP, DN = 32, 48
    p(MF, V(DP, 16), V(TPK, 4), V(VP, 4), '0');        p(MF, V(64, 16), V(TPK+8, 4), V(VP, 4), '0')
    p(MF, V(DP, 16), V(TPK+4, 4), V(VP+4, 4), V(DP, 16)); p(MF, V(64, 16), V(TPK+12, 4), V(VP+4, 4), V(64, 16))
    DN = 64
    p('v_mov_b32', 'v24', 0); p('v_mov_b32', 'v25', 0)
    for i in range(8):
        p('v_dot2c_f32_bf16', 'v24', s_ones, V(TPK+i)); p('v_dot2c_f32_bf16', 'v25', s_ones, V(TPK+8+i))
    p('v_and_b32', 'v26', 31, v_lane); p('v_lshlrev_b32', 'v26', 4, 'v26')
    p('v_add_u32', 'v26', s_reg, 'v26')
    p('v_lshlrev_b32', 'v27', 2, v_lane); p('v_add_u32', 'v27', s_reg, 'v27')
    E0 = slot_off(SLOT_E)
    p('ds_write_b32', 'v27', 'v24', mods='offset:%d' % (E0+4096)); p('ds_write_b32', 'v27', 'v25', mods='offset:%d' % (E0+4096+256))
    p('s_mov_b64', 'exec', S_USE)
    for q in range(4):
        p('ds_write_b128', 'v26', V(DP+4*q, 4), mods='offset:%d' % (E0 + q*512))
        p('ds_write_b128', 'v26', V(DN+4*q, 4), mods='offset:%d' % (E0 + 2048 + q*512))
    p('s_mov_b64', 'exec', -1)
    p.wait_all(vm=False)
    p('s_barrier')
    p('v_and_b32', 'v26', 31, v_lane); p('v_lshlrev_b32', 'v26', 4, 'v26')
    p('v_mov_b32', 'v27', 2048); p('v_cndmask_b32', 'v27', 'v27', 0, S_USE)
    p('v_add_u32', 'v26', 'v26', 'v27')
    p('s_lshl_b32', s_t0, s_w, 9); p('v_add_u32', 'v26', s_t0, 'v26')
    p('v_add_u32', 'v27', E0, 'v26')
    p('v_add_u32', 'v25', 2*REGION, 'v27')
    p('ds_read_b128', V(32, 4), 'v27'); p('ds_read_b128', V(36, 4), 'v27', mods='offset:%d' % REGION)
    p('ds_read_b128', V(40, 4), 'v25'); p('ds_read_b128', V(44, 4), 'v25', mods='offset:%d' % REGION)
    p('v_and_b32', 'v24', 31, v_lane); p('v_lshlrev_b32', 'v24', 2, 'v24')
    p('v_lshrrev_b32', 'v23', 5, v_lane); p('v_lshl_add_u32', 'v24', 'v23', 8, 'v24')
    p('v_add_u32', 'v24', E0+4096, 'v24'); p('v_add_u32', 'v22', 2*REGION, 'v24')
    for k, (base, off) in enumerate([('v24', 0), ('v24', 128), ('v24', REGION), ('v24', REGION+128),
                                     ('v22', 0), ('v22', 128), ('v22', REGION), ('v22', REGION+128)]):
        p('ds_read_b32', V(48+k), base, mods='offset:%d' % off)
    for k in range(4):
        p('v_add_f32', V(32+k), V(32+k), V(36+k)); p('v_add_f32', V(40+k), V(40+k), V(44+k))
    for k in range(4): p('v_add_f32', V(32+k), V(32+k), V(40+k))
    p('s_lshl_b32', s_t0, s_c, 4); p('s_add_u32', s_t0, s_t0, s_r); p('s_mul_i32', s_t0, s_t0, KVP_PITCH)
    p('s_add_u32', s_t0, s_t0, WS_KVP)
    p('buffer_store_dwordx4', V(32, 4), 'v26', srd(S_WS), s_t0, mods='offen sc1')
    for k in range(4): p('v_add_f32', V(48+k), V(48+k), V(52+k))
    p('v_add_f32', V(48), V(48), V(49)); p('v_add_f32', V(50), V(50), V(51)); p('v_add_f32', V(48), V(48), V(50))
    p('v_and_b32', 'v22', 31, v_lane); p('v_and_b32', 'v24', 3, 'v22'); p('v_lshrrev_b32', 'v25', 3, 'v22')
    p('v_lshl_add_u32', 'v24', 'v25', 2, 'v24'); p('v_bfe_u32', 'v25', 'v22', 2, 1); p('v_lshl_add_u32', 'v24', 'v25', 5, 'v24')
    p('v_lshl_add_u32', 'v24', 'v23', 4, 'v24'); p('v_lshlrev_b32', 'v24', 2, 'v24')
    p('s_cmp_eq_u32', s_w, 0); p('s_cselect_b32', s_t1, 4096, OOB); p('s_add_u32', s_t0, s_t0, s_t1)
    p('buffer_store_dword', V(48), 'v24', srd(S_WS), s_t0, mods='offen sc1')
    p.wait_all()
    p('s_barrier')
    publish(p, WS_FKV, s_c, s_r)

def publish(p, base, s_line, s_idx):
    p('s_lshl_b32', s_t0, s_line, 7); p('s_lshl_b32', s_t1, s_idx, 2); p('s_add_u32', s_t0, s_t0, s_t1)
    p('s_add_u32', s_t0, s_t0, base)
    p('s_cmp_eq_u32', s_w, 0); p('s_cselect_b32', s_t0, s_t0, OOB)
    p('v_mov_b32', 'v24', s_tag)
    p('v_cmp_eq_u32', 'vcc', 0, v_lane); p('v_mov_b32', 'v25', OOB); p('v_cndmask_b32', 'v25', 'v25', 0, 'vcc')
    p('buffer_store_dword', 'v24', 'v25', srd(S_WS), s_t0, mods='offen sc1')

def h_epilogue(p, un, G, U):
    for r in range(16):
        p('v_max_f32', V(G+r), 0, V(G+r)); p('v_mul_f32', V(U+r), V(U+r), v_r2)
    for r in range(16): p('v_mul_f32', V(G+r), V(G+r), V(U+r))
    for i in range(8): p('v_cvt_pk_bf16_f32', V(U+i), V(G+2*i), V(G+2*i+1))
    p('s_mul_i32', s_t0, s_tb, 86); p('s_add_u32', s_t1, s_u0, un); p('s_lshl_b32', s_t1, s_t1, 1)
    p('s_add_u32', s_t0, s_t0, s_t1); p('s_lshl_b32', s_t0, s_t0, 10); p('s_add_u32', s_t0, s_t0, WS_H)
    if un == 2:
        p('s_cmp_lt_u32', s_nu, 3); p('s_cselect_b32', s_t0, OOB, s_t0)
    p('buffer_store_dwordx4', V(U, 4), v_l16, srd(S_WS), s_t0, mods='offen sc1')
    p('buffer_store_dwordx4', V(U+4, 4), v_l16, srd(S_WS), s_t0, mods='offen offset:1024 sc1')

uid = [0]
def poll(p, base, s_line):
    uid[0] += 1
    L = 'L_poll%d' % uid[0]
    p('s_lshl_b32', s_t0, s_line, 7); p('s_add_u32', s_t0, s_t0, base)
    p('v_and_b32', 'v24', 15, v_lane); p('v_lshlrev_b32', 'v24', 2, 'v24')
    p('s_mov_b32', s_cnt, 20000)
    p.wait_all()
    txt = f"""{L}:
  buffer_load_dword v25, v24, {srd(S_WS)}, {s_t0} offen sc1
  s_waitcnt vmcnt(0)
  v_cmp_ne_u32 vcc, {s_tag}, v25
  s_nop 4
  s_cbranch_vccz {L}_done
  s_sub_u32 {s_cnt}, {s_cnt}, 1
  s_cmp_eq_u32 {s_cnt}, 0
  s_cbranch_scc1 {L}_done
  s_sleep 1
  s_branch {L}
{L}_done:"""
    p.raw(txt.lstrip(), drains_vm=True, defs=['v25', 'vcc', s_cnt], uses=['v24', s_t0, s_tag], states=8)

def o_phase(p, cfg, PHQ):
    poll(p, WS_FKV, s_c)
    p('v_and_b32', 'v26', 31, v_lane); p('v_lshlrev_b32', 'v26', 4, 'v26')
    p('v_mov_b32', 'v27', 2048); p('v_cndmask_b32', 'v27', 'v27', 0, S_USE)
    p('v_add_u32', 'v26', 'v26', 'v27')
    p('s_lshl_b32', s_t0, s_w, 9); p('v_add_u32', 'v26', s_t0, 'v26')
    p('v_lshlrev_b32', 'v27', 2, v_lane)
    p('s_lshl_b32', s_t0, s_c, 4); p('s_mul_i32', s_t0, s_t0, KVP_PITCH); p('s_add_u32', s_t0, s_t0, WS_KVP)
    G0 = 128
    for r in range(16):
        p('buffer_load_dwordx4', V(G0+4*r, 4), 'v26', srd(S_WS), s_t0, mods='offen sc1')
        p('s_add_u32', s_t1, s_t0, 4096)
        p('buffer_load_dword', V(G0+64+r), 'v27', srd(S_WS), s_t1, mods='offen sc1')
        if r < 15: p('s_add_u32', s_t0, s_t0, KVP_PITCH)
    for r in range(1, 16):
        for k in range(4): p('v_add_f32', V(G0+k), V(G0+k), V(G0+4*r+k))
        p('v_add_f32', V(G0+64), V(G0+64), V(G0+64+r))
    if cfg.stop == 'o1':
        dump_regs(p, cfg, [V(G0+k) for k in range(4)] + [V(G0+64)] + [V(PHQ+i) for i in range(16)], 0); return True
    E0 = slot_off(SLOT_E)
    p('v_add_u32', 'v25', s_reg, v_l16)
    p('ds_write_b128', 'v25', V(G0, 4), mods='offset:%d' % E0)
    p('v_lshlrev_b32', 'v27', 2, v_lane); p('v_add_u32', 'v27', s_reg, 'v27')
    p('ds_write_b32', 'v27', V(G0+64), mods='offset:%d' % (E0+4096))
    p.wait_all(vm=False)
    p('s_barrier')
    M = 32
    p('v_add_u32', 'v25', E0, v_l16); p('v_add_u32', 'v24', 2*REGION, 'v25')
    p('ds_read_b128', V(M, 4), 'v25'); p('ds_read_b128', V(M+4, 4), 'v25', mods='offset:%d' % REGION)
    p('ds_read_b128', V(M+8, 4), 'v24'); p('ds_read_b128', V(M+12, 4), 'v24', mods='offset:%d' % REGION)
    p('v_lshrrev_b32', 'v27', 5, v_lane); p('v_lshlrev_b32', 'v27', 7, 'v27'); p('v_add_u32', 'v27', s_reg, 'v27')
    Z = 64
    for k in range(8): p('ds_read_b128', V(Z+4*k, 4), 'v27', mods='offset:%d' % (E0+4096+16*k))
    PK = 48
    for i in range(8): p('v_cvt_pk_bf16_f32', V(PK+i), V(M+2*i), V(M+2*i+1))
    AP, AN = 96, 104
    for i in range(8):
        p('v_cndmask_b32', V(AP+i), 0, V(PK+i), S_USE)
        p('v_mov_b32', V(56+i), V(PK+i))
    for i in range(8): p('v_permlane32_swap_b32', V(PK+i), V(56+i))
    for i in range(8):
        p('v_cndmask_b32', V(PK+i), V(56+i), V(PK+i), S_HI)
        p('v_cndmask_b32', V(AN+i), 0, V(PK+i), S_USE)
    ZP = 32
    for i in range(16): p('v_cvt_pk_bf16_f32', V(ZP+i), V(Z+2*i), V(Z+2*i+1))
    NUM = 64
    p(MF, V(NUM, 16), V(AP, 4), V(PHQ, 4), '0')
    p(MF, V(NUM, 16), V(AP+4, 4), V(PHQ+4, 4), V(NUM, 16))
    p(MF, V(NUM, 16), V(AN, 4), V(PHQ+8, 4), V(NUM, 16))
    p(MF, V(NUM, 16), V(AN+4, 4), V(PHQ+12, 4), V(NUM, 16))
    p('v_mov_b32', 'v24', '0x358637bd')
    for i in range(16): p('v_dot2c_f32_bf16', 'v24', V(ZP+i), V(PHQ+i))
    p('v_mov_b32', 'v25', 'v24')
    p('v_permlane32_swap_b32', 'v24', 'v25')
    p('v_rcp_f32', 'v24', 'v24'); p('v_rcp_f32', 'v25', 'v25')
    if cfg.stop == 'o2':
        dump_regs(p, cfg, [V(AP+i) for i in range(16)] + [V(ZP+i) for i in range(16)] + [V(NUM+i) for i in range(16)] + ['v24', 'v25'], 0, tmp='v19'); return True
    for r in range(16): p('v_mul_f32', V(NUM+r), V(NUM+r), 'v24' if r < 8 else 'v25')
    for i in range(8): p('v_cvt_pk_bf16_f32', V(80+i), V(NUM+2*i), V(NUM+2*i+1))
    p('s_lshl_b32', s_t0, s_tb, 5); p('s_lshl_b32', s_t1, s_c, 1); p('s_add_u32', s_t0, s_t0, s_t1)
    p('s_lshl_b32', s_t0, s_t0, 10); p('s_add_u32', s_t0, s_t0, WS_O)
    p('buffer_store_dwordx4', V(80, 4), v_l16, srd(S_WS), s_t0, mods='offen sc1')
    p('buffer_store_dwordx4', V(84, 4), v_l16, srd(S_WS), s_t0, mods='offen offset:1024 sc1')
    p.wait_all()
    p('s_barrier')
    publish(p, WS_FHO, s_r, s_c)

P2_RING = 16
P2_LOOK = 8
def p2(p, cfg):
    NST = 32
    p('s_cmp_eq_u32', s_w, 3)
    p('s_cselect_b32', 's28', 's%d' % S_WO, 's%d' % S_WD); p('s_cselect_b32', 's29', 's%d' % (S_WO+1), 's%d' % (S_WD+1))
    p('s_mov_b32', s_t0, 524288); p('s_cselect_b32', 's30', s_t0, 1409024); p('s_mov_b32', 's31', '0x00020000')
    p('s_mul_i32', s_t0, s_w, 29); p('s_cselect_b32', s_t0, 0, s_t0)
    p('s_lshl_b32', s_wk, s_t0, 14); p('s_lshl_b32', s_t1, s_j, 7); p('s_add_u32', s_wk, s_wk, s_t1)
    p('s_lshl_b32', s_t1, s_i, 1)
    p('s_mul_i32', s_t2, s_t1, 86); p('s_add_u32', s_t2, s_t2, s_t0); p('s_lshl_b32', s_t2, s_t2, 10); p('s_add_u32', s_t2, s_t2, WS_H)
    p('s_lshl_b32', s_t3, s_t1, 15); p('s_add_u32', s_t3, s_t3, WS_O)
    p('s_cmp_eq_u32', s_w, 3)
    p('s_cselect_b32', s_a0, s_t3, s_t2)
    p('s_mov_b32', s_t1, 32*1024); p('s_cselect_b32', s_t1, s_t1, 86*1024); p('s_add_u32', s_a1, s_a0, s_t1)
    vd = ['v2', 'v3']; vr = ['v4', 'v5']
    p('v_lshrrev_b32', 'v17', 3, v_lane); p('v_bfe_u32', 'v18', 'v17', 1, 1); p('v_lshlrev_b32', 'v18', 2, 'v18')
    p('v_and_b32', 'v19', 7, v_lane); p('v_xor_b32', 'v18', 'v18', 'v19'); p('v_lshlrev_b32', 'v18', 4, 'v18')
    p('v_lshl_add_u32', vd[0], 'v17', 10, 'v18'); p('v_add_u32', vd[1], 7168, vd[0])
    p('v_and_b32', 'v17', 15, v_lane); p('v_lshrrev_b32', 'v18', 2, 'v17')
    p('v_lshrrev_b32', 'v19', 5, v_lane); p('v_lshl_add_u32', 'v18', 'v19', 2, 'v18'); p('v_lshlrev_b32', 'v18', 7, 'v18')
    p('v_bfe_u32', 'v19', v_lane, 4, 1); p('v_lshl_add_u32', 'v18', 'v19', 5, 'v18')
    p('v_and_b32', 'v19', 3, v_lane); p('v_lshl_add_u32', 'v18', 'v19', 3, 'v18')
    p('v_add_u32', 'v18', s_reg, 'v18')
    p('v_bfe_u32', 'v19', 'v17', 3, 1)
    p('v_lshl_add_u32', vr[0], 'v19', 6, 'v18')
    p('v_xor_b32', 'v19', 1, 'v19'); p('v_lshl_add_u32', vr[1], 'v19', 6, 'v18')
    def wdma(s):
        p('s_add_u32', 'm0', s_reg, (s % P2_RING)*2048)
        p('s_add_u32', s_t0, s_wk, s*16384)
        for a in range(2):
            p('buffer_load_dwordx4', vd[a], srd(28), s_t0, mods='offen offset:%d lds' % (a*1024), tag='pw%d' % s)
    XR = 208
    p('s_and_b32', s_t0, s_w, 1); p('s_lshr_b32', s_t1, s_w, 1)
    p('s_lshl_b32', s_t2, s_i, 1); p('s_add_u32', s_t2, s_t2, s_t1); p('s_lshl_b32', s_t2, s_t2, 15)
    p('s_lshl_b32', s_t3, s_j, 7); p('s_add_u32', s_t2, s_t2, s_t3); p('s_lshl_b32', s_t0, s_t0, 6); p('s_add_u32', s_e0, s_t2, s_t0)
    p('v_and_b32', 'v17', 31, v_lane); p('v_lshlrev_b32', 'v17', 10, 'v17')
    p('v_lshrrev_b32', 'v18', 5, v_lane); p('v_lshl_add_u32', 'v6', 'v18', 3, 'v17')
    for g in range(4):
        p('buffer_load_dwordx2', V(XR+2*g, 2), 'v6', srd(S_X), s_e0, mods='offen offset:%d' % (16*g))
    for s in range(P2_RING): wdma(s)
    poll(p, WS_FHO, 's69')
    if True:
        p('s_or_b32', s_t0, 's2', s_w); p('s_cmp_eq_u32', s_t0, 0); p('s_cselect_b32', s_t0, WS_TAG, OOB)
        p('v_mov_b32', 'v24', s_tag)
        p('v_cmp_eq_u32', 'vcc', 0, v_lane); p('v_mov_b32', 'v25', OOB); p('v_cndmask_b32', 'v25', 'v25', 0, 'vcc')
        p('buffer_store_dword', 'v24', 'v25', srd(S_WS), s_t0, mods='offen sc1')
    AB = 128
    NA = P2_LOOK + 1
    def aload(s):
        b = AB + 8*(s % NA)
        if s % 4 == 0:
            p('s_add_u32', s_t2, s_a0, s*1024); p('s_add_u32', s_t3, s_a1, s*1024)
        if s == 28:
            p('s_cmp_eq_u32', s_w, 2); p('s_cselect_b32', s_t2, OOB, s_t2); p('s_cselect_b32', s_t3, OOB, s_t3)
        if s == 29:
            p('s_cmp_eq_u32', s_w, 3); p('s_cselect_b32', s_t2, s_t2, OOB); p('s_cselect_b32', s_t3, s_t3, OOB)
        p('buffer_load_dwordx4', V(b, 4), v_l16, srd(S_WS), s_t2, mods='offen offset:%d sc1' % ((s % 4)*1024))
        p('buffer_load_dwordx4', V(b+4, 4), v_l16, srd(S_WS), s_t3, mods='offen offset:%d sc1' % ((s % 4)*1024))
    def wread(s):
        b = A_W + 8*(s % 3)
        p.wait_vm('pw%d' % s)
        for cb in range(2):
            for rho in range(2):
                p('ds_read_b64_tr_b16', A(b + 4*cb + 2*rho, 2), vr[cb], mods='offset:%d' % ((s % P2_RING)*2048 + rho*1024))
    ACC = 32
    for s in range(P2_LOOK): aload(s)
    wread(0); wread(1)
    for s in range(NST):
        if s + P2_LOOK < NST: aload(s + P2_LOOK)
        wb = A_W + 8*(s % 3); ab = AB + 8*(s % NA)
        for tbi in range(2):
            for cb in range(2):
                acc = V(ACC + 16*(2*tbi+cb), 16)
                p(MF, acc, A(wb+4*cb, 4), V(ab+4*tbi, 4), '0' if s == 0 else acc)
            if tbi == 0 and s + 2 < NST: wread(s+2)
        if s >= 1 and s - 1 + P2_RING < NST: wdma(s - 1 + P2_RING)
    p.wait_all()
    p('s_barrier')
    p('v_add_u32', 'v17', s_reg, v_l16)
    for tile in range(4):
        for q in range(4):
            p('ds_write_b128', 'v17', V(ACC+16*tile+4*q, 4), mods='offset:%d' % (tile*4096 + q*1024))
    p.wait_all()
    p('s_barrier')
    p('s_lshl_b32', s_t0, s_w, 12)
    p('v_add_u32', 'v17', s_t0, v_l16); p('v_add_u32', 'v18', 2*REGION, 'v17')
    R = [96, 112, 128, 144]
    for sw in range(4):
        base = 'v17' if sw < 2 else 'v18'
        for q in range(4):
            p('ds_read_b128', V(R[sw]+4*q, 4), base, mods='offset:%d' % ((sw & 1)*REGION + q*1024))
    Dn, Sv = R[0], R[3]
    for r in range(16):
        p('v_add_f32', V(Dn+r), V(Dn+r), V(R[1]+r))
    for r in range(16):
        p('v_add_f32', V(Dn+r), V(Dn+r), V(R[2]+r))
    T = 32
    for r in range(16): p('v_mul_f32', V(T+r), '0xbfb8aa3b', V(Dn+r))
    for r in range(16): p('v_exp_f32', V(T+r), V(T+r))
    for r in range(16): p('v_add_f32', V(T+r), 1.0, V(T+r))
    for r in range(16): p('v_rcp_f32', V(T+r), V(T+r))
    for r in range(16): p('v_mul_f32', V(T+r), V(T+r), V(Dn+r))
    XU = 48
    for g in range(4):
        for k in range(2):
            p('v_lshlrev_b32', V(XU+4*g+2*k), 16, V(XR+2*g+k))
            p('v_and_b32', V(XU+4*g+2*k+1), '0xffff0000', V(XR+2*g+k))
    for r in range(16): p('v_fma_f32', V(T+r), V(Sv+r), V(T+r), V(XU+r))
    for i in range(8): p('v_cvt_pk_bf16_f32', V(64+i), V(T+2*i), V(T+2*i+1))
    for g in range(4):
        p('buffer_store_dwordx2', V(64+2*g, 2), 'v6', srd(S_OUT), s_e0, mods='offen offset:%d' % (16*g))

def build(cfg):
    p = Prog()
    prologue(p, cfg)
    x_dma(p, cfg)
    w_addr_setup(p)
    w_dma(p, 0)
    const_setup(p)
    p.wait_all(vm=False)
    p('s_add_u32', s_tag, s_tag, TAG_INC)
    p('s_lshr_b32', 's69', s_i, 1)
    x_read_stats(p, cfg)
    p.wait_all(vm=False)
    for T in (1, 2, 3, 4): w_dma(p, T)
    phi_pack(p)
    ln_finish(p)
    center(p)
    if cfg.stop == 'xc':
        dump_regs(p, cfg, [V(XB+i) for i in range(128)] + [v_rstd], 0); p.wait_all(); p('s_branch', 'L_end'); return fin(p, cfg)
    accs = {0: V(KA, 16), 1: V(VA, 16), 2: V(QA, 16)}
    tile_passes(p, [0, 1], accs)
    if cfg.stop == 'kv':
        dump_regs(p, cfg, [V(32+i) for i in range(32)], 0); p.wait_all(); p('s_branch', 'L_end'); return fin(p, cfg)
    k_epilogue(p, cfg)
    tile_passes(p, [2], {2: V(32, 16)}, dma_after={2: [5]})
    PHQ = 112
    softmax_phi(p, 32, 48, 64, PHQ)
    if cfg.stop == 'q':
        dump_regs(p, cfg, [V(PHQ+i) for i in range(16)], 0); p.wait_all(); p('s_branch', 'L_end'); return fin(p, cfg)
    G, U = 32, 48
    tile_passes(p, [3, 4], {3: V(G, 16), 4: V(U, 16)}, dma_after={3: [6]})
    h_epilogue(p, 0, G, U)
    tile_passes(p, [5, 6], {5: V(G, 16), 6: V(U, 16)}, dma_after={5: [7], 6: [8]})
    h_epilogue(p, 1, G, U)
    tile_passes(p, [7, 8], {7: V(G, 16), 8: V(U, 16)})
    h_epilogue(p, 2, G, U)
    o_phase(p, cfg, PHQ)
    if cfg.stop in ('o', 'o1', 'o2'):
        p.wait_all(); p('s_branch', 'L_end'); return fin(p, cfg)
    p2(p, cfg)
    return fin(p, cfg)

def fin(p, cfg):
    p.wait_all()
    p.label('L_end')
    p('s_endpgm')
    ins, stats = finalize(p)
    body = render(ins)
    head = open(os.path.join(os.path.dirname(os.path.abspath(__file__)), '..', 'cdna_kernels', NAME + '.s.ref')).read()
    hdr = head[:head.index('; Override launch geometry')]
    hdr += '; Generated by gen/gen.py (hand-written generator). One persistent workgroup per CU.\n'
    hdr += '; @launch grid=(256,1,1) block=(256,1,1) lds=163840\n'
    txt = hdr + '.amdgcn_target "amdgcn-amd-amdhsa--gfx950"\n.text\n.globl %s\n.p2align 8\n.type %s,@function\n%s:\n' % (KNAME, KNAME, KNAME)
    txt += body
    txt += """.section .rodata,"a"
.p2align 6
.amdhsa_kernel %s
  .amdhsa_next_free_vgpr 512
  .amdhsa_next_free_sgpr 102
  .amdhsa_accum_offset 256
  .amdhsa_group_segment_fixed_size 0
  .amdhsa_kernarg_size 88
  .amdhsa_user_sgpr_count 2
  .amdhsa_user_sgpr_kernarg_segment_ptr 1
  .amdhsa_system_sgpr_workgroup_id_x 1
  .amdhsa_float_denorm_mode_32 3
.end_amdhsa_kernel
""" % KNAME
    return txt, stats

if __name__ == '__main__':
    import argparse
    ap = argparse.ArgumentParser()
    ap.add_argument('-o', default=None); ap.add_argument('--stop', default=None); ap.add_argument('--dbg', action='store_true')
    a = ap.parse_args()
    cfg = Cfg(); cfg.stop = a.stop; cfg.dbg = a.dbg or (a.stop is not None)
    txt, stats = build(cfg)
    out = a.o or os.path.join(os.path.dirname(os.path.abspath(__file__)), '..', 'cdna_kernels', NAME + '.s')
    open(out, 'w').write(txt)
    print(out, stats, len(txt), 'bytes')
```

```python
import sys, os
sys.path.insert(0, os.path.dirname(os.path.abspath(__file__)))
from asmlib import *

NAME = 'recurrent_scan__linear_kernel_hedgehog__glu_gated_reglu__prompt'
KNAME = NAME + '_kernel'

WS_TAG = 0
WS_FKV = 0x1000
WS_FH  = 0x2000
WS_FO  = 0x3000
WS_KVP = 0x10000
KVP_PITCH = 4608
WS_O   = 0x200000
WS_H   = 0x400000
WS_END = 0x400000 + 64*86*1024
WS_DBG = 0x1000000
TAG_INC = 0x9E3779B9
OOB = 0x40000000

S_X, S_WQKV, S_WG, S_WU, S_WS, S_WPHI, S_WD, S_WO, S_OUT = 8, 12, 16, 20, 24, 28, 32, 36, 40
def srd(n): return 's[%d:%d]' % (n, n+3)
s_w, s_r, s_c, s_tag, s_reg = 's44', 's45', 's46', 's47', 's48'
s_t0, s_t1, s_t2, s_t3 = 's49', 's50', 's51', 's52'
s_u0, s_nu = 's53', 's54'
s_i, s_j = 's55', 's56'
s_tb = 's57'
s_ones = 's58'
s_a1, s_a2, s_w1, s_w2, s_pb = 's59', 's60', 's61', 's62', 's63'
S_USE = 's[64:65]'
S_HI = 's[66:67]'
s_cnt = 's68'
s_fr = 's69'
S_M0, S_M1 = 's[70:71]', 's[72:73]'
S_OFFQ, S_OFFG = 80, 88
s_rot, s_d0, s_d1, s_e0, s_ao = 's96', 's97', 's98', 's99', 's100'
REGION = 40960
L_GU, L_VQ, L_E = 0, 24576, 32768
L_Q = 0

v_lane = 'v1'
vW = ['v2', 'v3', 'v4']
v_q = 'v5'
vg = ['v6', 'v7', 'v8']
vG = ['v9', 'v10', 'v11']
v_l16 = 'v13'
v_rstd, v_c1, v_r2 = 'v14', 'v15', 'v16'
XR0 = 128
XA = 128
def V(a, n=1): return 'v%d' % a if n == 1 else 'v[%d:%d]' % (a, a+n-1)
def A(a, n=1): return 'a%d' % a if n == 1 else 'a[%d:%d]' % (a, a+n-1)
def xa(s): return A(XA+4*s, 4)
A_W = 0
A_E1, A_E2, A_PH1, A_PH2, A_ONE = 32, 36, 40, 44, 48
MF = 'v_mfma_f32_32x32x16_bf16'

class Cfg:
    stamps = False; nst = 0; names = []
    stop = None; dbg = False
    interleave = True
    touch = True

class Delay:
    def __init__(self, n): self.n = n
class Group:
    def __init__(self, ins): self.ins = list(ins)

def weight(i):
    if isinstance(i, Group): return sum(weight(x) for x in i.ins)
    if i.kind in ('comment', 'label', 'wait_vm', 'wait_lgkm', 'wait_all'): return 0
    return 2 if i.kind == 'trans' else 1

def glue_scc(filler):
    out = []; i = 0
    while i < len(filler):
        it = filler[i]
        if isinstance(it, Ins) and it.op.startswith('s_cmp'):
            j = i + 1; last = i
            while j < len(filler) and isinstance(filler[j], Ins) and not (('scc', 0) in filler[j].defs and ('scc', 0) not in filler[j].uses):
                if ('scc', 0) in filler[j].uses: last = j
                j += 1
            out.append(Group(filler[i:last+1])); i = last + 1
        else:
            out.append(it); i += 1
    return out

def merge(slots, filler, start=0, cap=None):
    filler = glue_scc(filler)
    out = Prog()
    idx = 0; hold = 0
    for n, sl in enumerate(slots):
        out.extend(sl)
        if n < start or idx >= len(filler): continue
        if hold > 0: hold -= 1; continue
        rest = filler[idx:]
        wsum = sum(weight(x) for x in rest if not isinstance(x, Delay))
        dsum = sum(x.n for x in rest if isinstance(x, Delay))
        nleft = max(1, len(slots) - n - dsum)
        budget = max(1, -(-wsum // nleft))
        if cap: budget = min(budget, cap)
        while idx < len(filler) and budget > 0:
            it = filler[idx]
            if isinstance(it, Delay): hold = it.n; idx += 1; break
            if isinstance(it, Group): out.extend(it.ins)
            else: out.add(it)
            budget -= weight(it); idx += 1
    for it in filler[idx:]:
        if isinstance(it, Delay): continue
        if isinstance(it, Group): out.extend(it.ins)
        else: out.add(it)
    return out

def flat(items):
    p = Prog()
    for it in items:
        if isinstance(it, Delay): continue
        if isinstance(it, Group): p.extend(it.ins)
        else: p.add(it)
    return p

def spread(slots, pieces, first=0, last=None):
    last = len(slots) - 1 if last is None else last
    n = len(pieces)
    used = set()
    for k, pc in enumerate(pieces):
        pos = first + (k * (last - first + 1)) // n
        sl = slots[pos]; ins = list(pc.ins)
        if pos not in used and len(ins) == 2 and ins[0].defs[:1] == [('m0', 0)]:
            at = max(i for i, x in enumerate(sl.ins) if x.kind == 'mfma') + 1
            sl.ins.insert(at, ins.pop(0))
        used.add(pos)
        sl.ins.extend(ins)

def dump_regs(p, cfg, regs, idx, tmp='v17'):
    p('s_lshl_b32', s_t0, 's2', 2); p('s_add_u32', s_t0, s_t0, s_w)
    p('s_lshl_b32', s_t0, s_t0, 16)
    p('s_add_u32', s_t0, s_t0, WS_DBG + idx*256)
    p('v_lshlrev_b32', tmp, 2, v_lane)
    for k, r in enumerate(regs):
        if r[0] == 'a':
            p('v_accvgpr_read_b32', 'v18', r); r = 'v18'
        if k and k % 16 == 0: p('s_add_u32', s_t0, s_t0, 4096)
        p('buffer_store_dword', r, tmp, srd(S_WS), s_t0, mods='offen offset:%d' % ((k % 16)*256))
        if r == 'v18': p.wait_all()
    p.wait_all()

def stamp(p, cfg, name, real=False):
    if not cfg.stamps: return
    p('s_memrealtime' if real else 's_memtime', 's[78:79]')
    p.wait_all(vm=False)
    p('v_writelane_b32', 'v0', 's78', cfg.nst)
    cfg.names.append(name); cfg.nst += 1

def stamp_out(p, cfg):
    if not cfg.stamps: return
    p('s_lshl_b32', s_t0, 's2', 2); p('s_add_u32', s_t0, s_t0, s_w); p('s_lshl_b32', s_t0, s_t0, 8)
    p('s_add_u32', s_t0, s_t0, WS_DBG)
    p('v_lshlrev_b32', 'v17', 2, v_lane)
    p('buffer_store_dword', 'v0', 'v17', srd(S_WS), s_t0, mods='offen')

def prologue(p, cfg):
    p('s_cmp_ge_u32', 's2', 256)
    p('s_cbranch_scc1', 'L_end')
    for sr, off in ((S_X, 0), (S_WQKV, 8), (S_WPHI, 16), (S_WO, 24), (S_WG, 40), (S_WU, 48), (S_WD, 56), (S_OUT, 64), (S_WS, 80)):
        p('s_load_dwordx2', 's[%d:%d]' % (sr, sr+1), 's[0:1]', off)
    p('v_and_b32', v_lane, 63, 'v0')
    p('v_lshrrev_b32', 'v17', 6, 'v0')
    p('v_readfirstlane_b32', s_w, 'v17')
    sizes = {S_X: 2097152, S_WQKV: 1572864, S_WPHI: 16384, S_WO: 524288, S_WG: 1409024, S_WU: 1409024, S_WD: 1409024,
             S_OUT: 2097152, S_WS: (0x6000000 if cfg.dbg else WS_END)}
    for sr, sz in sizes.items():
        p('s_mov_b32', 's%d' % (sr+2), sz); p('s_mov_b32', 's%d' % (sr+3), '0x00020000')
    p('s_and_b32', s_t0, 's2', 7)
    p('s_lshr_b32', s_t1, 's2', 3)
    p('s_and_b32', s_t2, s_t0, 1); p('s_lshl_b32', s_t2, s_t2, 3)
    p('s_lshr_b32', s_t3, s_t1, 2); p('s_add_u32', s_r, s_t2, s_t3)
    p('s_lshr_b32', s_t2, s_t0, 1); p('s_lshl_b32', s_t2, s_t2, 2)
    p('s_and_b32', s_t3, s_t1, 3); p('s_add_u32', s_c, s_t2, s_t3)
    p('s_lshl_b32', s_t2, s_t0, 2); p('s_lshr_b32', s_t3, s_t1, 3); p('s_add_u32', s_i, s_t2, s_t3)
    p('s_and_b32', s_j, s_t1, 7)
    p('s_lshr_b32', s_fr, s_i, 1)
    p('s_and_b32', s_t2, s_c, 3); p('s_lshl_b32', s_t2, s_t2, 1); p('s_add_u32', s_rot, s_r, s_t2)
    p('s_bfe_u32', s_t2, s_c, '0x10002'); p('s_add_u32', s_rot, s_rot, s_t2); p('s_and_b32', s_rot, s_rot, 7)
    if not cfg.rot: p('s_mov_b32', s_rot, 0)
    p('s_mul_i32', s_reg, s_w, REGION)
    p('s_lshl_b32', s_tb, s_r, 2); p('s_add_u32', s_tb, s_tb, s_w)
    if cfg.cpf:
        p.raw('s_getpc_b64 s[72:73]\nL_pc:\n  s_sub_u32 s72, s72, L_pc-L_code0\n  s_subb_u32 s73, s73, 0\n  s_mov_b32 s74, L_end-L_code0\n  s_mov_b32 s75, 0x00020000',
              defs=['s72', 's73', 's74', 's75', 'scc'], states=5)
        p('s_lshr_b32', s_t1, 's2', 3)
        p('s_mul_i32', s_t1, s_t1, cfg.cpf_n*128)
        p('v_lshlrev_b32', 'v21', 7, v_lane)
        p('v_cmp_gt_u32', 'vcc', cfg.cpf_n, v_lane); p('v_mov_b32', 'v22', OOB); p('v_cndmask_b32', 'v22', 'v22', 'v21', 'vcc')
        p('s_cmp_eq_u32', s_w, cfg.cpf_wave); p('s_cselect_b32', s_t1, s_t1, OOB)
        p('buffer_load_dword', 'a62', 'v22', 's[72:75]', s_t1, mods='offen')
    T = 'v21'
    p('v_lshrrev_b32', 'v22', 3, v_lane); p('v_lshrrev_b32', 'v23', 4, v_lane); p('v_and_b32', 'v24', 7, v_lane)
    for a in range(2):
        p('v_or_b32', T, 4*a, 'v23'); p('v_xor_b32', T, 'v24', T); p('v_lshlrev_b32', T, 4, T)
        p('v_lshl_add_u32', V(17+a), 'v22', 10, T)
    p('v_add_u32', 'v19', 2*7168, 'v17'); p('v_add_u32', 'v20', 3*7168, 'v18'); p('v_add_u32', 'v18', 7168, 'v18')
    p('s_lshl_b32', s_e0, s_tb, 15)
    p.wait_all(vm=False)

def x_issue(p, q):
    p('s_add_u32', s_d0, s_rot, q); p('s_and_b32', s_d0, s_d0, 7); p('s_lshl_b32', s_d0, s_d0, 7)
    p('s_add_u32', s_d0, s_d0, s_e0)
    p('s_add_u32', 'm0', s_reg, q*4096)
    for a in range(4):
        p('buffer_load_dwordx4', V(17+a), srd(S_X), s_d0, mods='offen offset:%d lds' % (a*1024), tag='x%d' % q)

def setup_scalar(p, cfg):
    p('s_load_dword', s_tag, 's[%d:%d]' % (S_WS, S_WS+1), WS_TAG)
    p('s_mul_i32', s_t2, s_c, 3); p('s_lshl_b32', s_t3, s_c, 1); p('s_add_u32', s_t3, s_t3, 11)
    p('s_cmp_lt_u32', s_c, 11)
    p('s_cselect_b32', s_u0, s_t2, s_t3); p('s_cselect_b32', s_nu, 3, 2)
    p('s_mov_b32', s_ones, '0x3f803f80')
    p('s_mov_b32', 's64', '0x0000ffff'); p('s_mov_b32', 's65', '0xffff0000')
    p('s_mov_b32', 's66', 0); p('s_mov_b32', 's67', -1)
def setup_offsets(p):
    p('s_lshl_b32', s_t3, s_w, 4); p('s_lshl_b32', s_t2, s_u0, 6)
    for i in range(8):
        p('s_add_u32', s_t0, s_rot, i); p('s_and_b32', s_t0, s_t0, 7); p('s_lshl_b32', s_t0, s_t0, 6); p('s_add_u32', s_t0, s_t0, s_t3)
        p('s_mul_i32', 's%d' % (S_OFFQ+i), s_t0, 3072)
        p('s_mul_i32', s_t1, s_t0, 2752); p('s_add_u32', 's%d' % (S_OFFG+i), s_t1, s_t2)
    p('s_lshl_b32', s_t0, s_c, 6)
    for i in range(8): p('s_add_u32', 's%d' % (S_OFFQ+i), 's%d' % (S_OFFQ+i), s_t0)
    p('v_lshrrev_b32', 'v22', 2, v_lane); p('v_and_b32', 'v23', 3, v_lane); p('v_lshlrev_b32', 'v23', 4, 'v23')
    p('s_mov_b32', s_t0, 3072); p('v_mul_lo_u32', 'v21', 'v22', s_t0); p('v_add_u32', v_q, 'v21', 'v23')
def setup_lanes(p):
    p('s_mov_b32', s_t0, 43691); p('s_mov_b32', s_t1, 2752)
    for a in range(3):
        p('v_add_u32', 'v21', 64*a, v_lane)
        p('v_mul_lo_u32', 'v22', 'v21', s_t0); p('v_lshrrev_b32', 'v22', 19, 'v22')
        p('v_mul_u32_u24', 'v23', 12, 'v22'); p('v_sub_u32', 'v23', 'v21', 'v23'); p('v_lshlrev_b32', 'v23', 4, 'v23')
        p('v_mul_lo_u32', 'v22', 'v22', s_t1); p('v_add_u32', 'v22', 'v22', 'v23')
        p('v_subrev_u32', vg[a], a*1024, 'v22')
    p('v_and_b32', 'v21', 15, v_lane); p('v_lshrrev_b32', 'v21', 2, 'v21')
    p('v_lshrrev_b32', 'v22', 5, v_lane); p('v_lshl_add_u32', 'v21', 'v22', 3, 'v21')
    p('v_and_b32', 'v22', 3, v_lane); p('v_lshlrev_b32', 'v22', 3, 'v22')
    p('v_bfe_u32', 'v23', v_lane, 4, 1); p('v_lshl_add_u32', 'v22', 'v23', 5, 'v22')
    p('v_lshl_add_u32', vW[0], 'v21', 6, 'v22')
    p('v_add_u32', vW[1], 65536, vW[0]); p('v_add_u32', vW[2], 131072, vW[0])
    p('v_mul_u32_u24', 'v21', 192, 'v21'); p('v_add_u32', vG[0], 'v21', 'v22')
    p('v_add_u32', vG[1], 65536, vG[0]); p('v_add_u32', vG[2], 131072, vG[0])
    p('v_lshlrev_b32', v_l16, 4, v_lane)

def onehot(p, dst_a, valid_mask, vjm, tmp0, tmp1):
    p('v_and_b32', tmp0, 1, vjm); p('v_lshlrev_b32', tmp0, 4, tmp0)
    p('v_mov_b32', tmp1, '0x3f80'); p('v_lshlrev_b32', tmp0, tmp0, tmp1)
    p('v_cndmask_b32', tmp0, 0, tmp0, valid_mask)
    p('v_lshrrev_b32', tmp1, 1, vjm)
    for i in range(4):
        p('v_cmp_eq_u32', 'vcc', i, tmp1)
        p('v_cndmask_b32', 'v27', 0, tmp0, 'vcc')
        p('v_accvgpr_write_b32', A(dst_a+i), 'v27')

def const_setup(p):
    p('v_and_b32', 'v21', 31, v_lane); p('v_lshrrev_b32', 'v22', 5, v_lane); p('v_bfe_u32', 'v23', 'v21', 2, 1)
    p('v_and_b32', 'v24', 3, 'v21'); p('v_bfe_u32', 'v25', 'v21', 3, 1); p('v_lshl_add_u32', 'v24', 'v25', 2, 'v24')
    p('v_cmp_eq_u32', S_M0, 'v23', 'v22'); p('v_cmp_gt_u32', S_M1, 16, 'v21')
    p('s_and_b64', 's[74:75]', S_M0, S_M1); p('s_andn2_b64', 's[76:77]', S_M0, S_M1)
    onehot(p, A_E1, 's[74:75]', 'v24', 'v25', 'v26')
    onehot(p, A_E2, 's[76:77]', 'v24', 'v25', 'v26')
    p('v_mov_b32', 'v25', s_ones); p('v_cndmask_b32', 'v25', 'v25', 0, S_HI)
    p('v_accvgpr_write_b32', A(A_ONE), 'v25')
    for i in range(1, 4): p('v_accvgpr_write_b32', A(A_ONE+i), 0)
def phi_loads(p):
    p('v_and_b32', 'v21', 31, v_lane); p('v_lshrrev_b32', 'v22', 5, v_lane); p('v_bfe_u32', 'v23', 'v21', 2, 1)
    p('v_and_b32', 'v24', 3, 'v21'); p('v_lshrrev_b32', 'v25', 3, 'v21'); p('v_lshl_add_u32', 'v24', 'v25', 2, 'v24')
    p('v_lshlrev_b32', 'v24', 1, 'v24'); p('v_lshl_add_u32', 'v24', 'v22', 7, 'v24'); p('v_lshl_add_u32', 'v24', 'v23', 9, 'v24')
    p('s_lshl_b32', s_t0, s_c, 10)
    for j in range(8):
        p('buffer_load_ushort', V(112+j), 'v24', srd(S_WPHI), s_t0, mods='offen offset:%d' % (((j & 3) + 8*(j >> 2))*32))
    p('v_cmp_eq_u32', S_M0, 0, 'v23')

def phi_pack(p):
    for i in range(4):
        p('v_lshl_or_b32', V(112+2*i), V(113+2*i), 16, V(112+2*i))
        p('v_cndmask_b32', 'v25', 0, V(112+2*i), S_M0); p('v_cndmask_b32', 'v26', V(112+2*i), 0, S_M0)
        p('v_accvgpr_write_b32', A(A_PH1+i), 'v25'); p('v_accvgpr_write_b32', A(A_PH2+i), 'v26')

def qkv_piece(name, i, lds_off, tag):
    p = Prog()
    p('s_add_u32', 'm0', s_reg, lds_off + i*1024)
    p('s_add_u32', s_d1, 's%d' % (S_OFFQ+i), {'q': 0, 'k': 1024, 'v': 2048}[name])
    p('buffer_load_dwordx4', v_q, srd(S_WQKV), s_d1, mods='offen lds', tag=tag)
    return p
def gu_pieces(j):
    out = []
    for m, sr in enumerate((S_WG, S_WU)):
        for a in range(3):
            p = Prog()
            p('s_add_u32', 'm0', s_reg, L_GU + (j & 3)*6144 + m*3072)
            p('buffer_load_dwordx4', vg[a], srd(sr), 's%d' % (S_OFFG+j), mods='offen offset:%d lds' % (a*1024), tag='gu%d' % j)
            out.append(p)
    return out

def rd64(p, s, lds_off, buf, tag=None):
    addr = (s & 3)*REGION + lds_off + (s >> 2)*1024
    for rho in range(2):
        a = addr + rho*256
        p('ds_read_b64_tr_b16', A(A_W + 4*buf + 2*rho, 2), vW[a >> 16], mods='offset:%d' % (a & 0xffff), tag=tag)
def rdgu(p, m, u, s, buf, tag=None):
    addr = (s & 3)*REGION + L_GU + ((s >> 2) & 3)*6144 + m*3072 + u*64
    for rho in range(2):
        a = addr + rho*768
        p('ds_read_b64_tr_b16', A(A_W + 4*buf + 2*rho, 2), vG[a >> 16], mods='offset:%d' % (a & 0xffff), tag=tag)

def make_slots(seq, rd, mf, pre, dist=4, nb=6, pair=True):
    head = Prog()
    def issue(p, n):
        if n in pre: p.extend(pre[n])
        rd(p, seq[n], n % nb, 'r%d' % n)
    for n in range(min(dist, len(seq))): issue(head, n)
    slots = []
    for n, it in enumerate(seq):
        p = Prog()
        if pair and n % 2 == 0 and n + 1 < len(seq): p.wait_lgkm('r%d' % (n+1))
        mf(p, it, n % nb)
        if n + dist < len(seq): issue(p, n + dist)
        slots.append(p)
    return head, slots

def bar(tag):
    p = Prog()
    if tag: p.wait_vm(tag)
    p('s_barrier')
    return p

def x_phase(p, cfg):
    for q in range(3): x_issue(p, q)
    setup_scalar(p, cfg)
    p('v_and_b32', 'v21', 31, v_lane); p('v_lshrrev_b32', 'v22', 5, v_lane); p('v_bfe_u32', 'v23', 'v21', 1, 3)
    p('v_xor_b32', 'v23', 'v22', 'v23')
    p('v_lshlrev_b32', 'v24', 7, 'v21'); p('v_add_u32', 'v24', s_reg, 'v24')
    for sp in range(4):
        p('v_xor_b32', 'v25', 2*sp, 'v23'); p('v_lshl_add_u32', V(48+sp), 'v25', 4, 'v24')
    for r in ('v28', 'v29', 'v30', 'v31'): p('v_mov_b32', r, 0)
    setup_offsets(p)
    stamp(p, cfg, 'setup')
    f = Prog(); setup_lanes(f); const_setup(f)
    fill = f.ins; per = -(-len(fill) // 6)
    def stats(q):
        for sp in range(4):
            for k in range(4):
                r = V(XR0 + 16*q + 4*sp + k)
                p('v_dot2c_f32_bf16', 'v28' if k & 1 else 'v29', s_ones, r)
                p('v_dot2c_f32_bf16', 'v30' if k & 1 else 'v31', r, r)
    kp = [qkv_piece('k', i, L_E, 'wk') for i in range(8)]
    for q in range(8):
        if q < 6:
            for ins in fill[q*per:(q+1)*per]: p.add(ins)
        p.wait_vm('x%d' % q)
        for sp in range(4):
            p('ds_read_b128', 'v[%d:%d]' % (XR0+16*q+4*sp, XR0+16*q+4*sp+3), V(48+sp), mods='offset:%d' % (q*4096))
        if q + 3 < 8: x_issue(p, q+3)
        else:
            for pc in kp[3*(q-5):3*(q-5)+3]: p.extend(pc)
        if q: stats(q-1)
    stats(7)

def ln_finish(p):
    p('v_add_f32', 'v28', 'v28', 'v29'); p('v_add_f32', 'v30', 'v30', 'v31')
    p('v_mov_b32', 'v29', 'v28'); p('v_mov_b32', 'v31', 'v30')
    p('v_permlane32_swap_b32', 'v28', 'v29'); p('v_permlane32_swap_b32', 'v30', 'v31')
    p('v_add_f32', 'v28', 'v28', 'v29'); p('v_add_f32', 'v30', 'v30', 'v31')
    p('s_mov_b32', s_t0, '0x3b000000')
    p('v_mul_f32', 'v28', s_t0, 'v28'); p('v_mul_f32', 'v30', s_t0, 'v30')
    p('v_fma_f32', 'v30', '-v28', 'v28', 'v30'); p('v_max_f32', 'v30', 0, 'v30')
    p('v_add_f32', 'v30', '0x3727c5ac', 'v30')
    p('v_rsq_f32', v_rstd, 'v30')
    for i in range(16): p('v_sub_f32', V(32+i), 0, 'v28')
    p('v_mul_f32', v_c1, '0x3fb8aa3b', v_rstd); p('v_mul_f32', v_r2, v_rstd, v_rstd)

def center(p, pieces):
    D = [48, 64, 80]; TMP = [96, 104]
    def m1(pp): p(MF, V(D[pp % 3], 16), A(A_E1, 4), V(XR0+8*pp, 4), V(32, 16))
    def m2(pp): p(MF, V(D[pp % 3], 16), A(A_E2, 4), V(XR0+8*pp+4, 4), V(D[pp % 3], 16))
    m1(0); m2(0); m1(1); m2(1)
    for pp in range(16):
        d = D[pp % 3]; t = TMP[pp & 1]
        if pp + 2 < 16: m1(pp+2)
        for i in range(8): p('v_cvt_pk_bf16_f32', V(t+i), V(d+2*i), V(d+2*i+1))
        if pp + 2 < 16: m2(pp+2)
        for i in range(8): p('v_accvgpr_write_b32', A(XA+8*pp+i), V(t+i))
        if pieces: p.extend(pieces.pop(0))
    for pc in pieces: p.extend(pc)

def softmax_items(acc, P, E, out):
    p = Prog(); items = []
    def flush():
        items.extend(p.ins); p.ins = []
    K = E
    for i in range(8): p('v_cvt_pk_bf16_f32', V(K+i), V(acc+2*i), V(acc+2*i+1))
    p(MF, V(P, 16), A(A_PH1, 4), V(K, 4), '0')
    p(MF, V(P, 16), A(A_PH2, 4), V(K+4, 4), V(P, 16))
    flush(); items.append(Delay(2))
    mx, mn = 'v17', 'v18'
    p('v_max3_f32', mx, V(P), V(P+1), V(P+2)); p('v_min3_f32', mn, V(P), V(P+1), V(P+2))
    for i in range(3, 15, 2):
        p('v_max3_f32', mx, mx, V(P+i), V(P+i+1)); p('v_min3_f32', mn, mn, V(P+i), V(P+i+1))
    p('v_max_f32', mx, mx, V(P+15)); p('v_min_f32', mn, mn, V(P+15))
    p('v_mul_f32', mx, mx, v_c1); p('v_mul_f32', mn, mn, v_c1)
    for r in range(16):
        p('v_fma_f32', V(E+r), V(P+r), v_c1, '-'+mx); p('v_fma_f32', V(E+16+r), '-'+V(P+r), v_c1, mn)
    for r in range(32): p('v_exp_f32', V(E+r), V(E+r))
    sp, sn = 'v19', 'v20'
    p('v_add_f32', sp, V(E), V(E+1)); p('v_add_f32', sn, V(E+16), V(E+17))
    for r in range(2, 16):
        p('v_add_f32', sp, sp, V(E+r)); p('v_add_f32', sn, sn, V(E+16+r))
    p('v_rcp_f32', sp, sp); p('v_rcp_f32', sn, sn)
    for r in range(16):
        p('v_mul_f32', V(E+r), V(E+r), sp); p('v_mul_f32', V(E+16+r), V(E+16+r), sn)
    for i in range(16): p('v_cvt_pk_bf16_f32', V(out+i), V(E+2*i), V(E+2*i+1))
    flush()
    return items

KA, VA = 32, 48

def publish_ins(base, s_line, s_idx):
    p = Prog()
    p('s_lshl_b32', s_t0, s_line, 7); p('s_lshl_b32', s_t1, s_idx, 2); p('s_add_u32', s_t0, s_t0, s_t1)
    p('s_add_u32', s_t0, s_t0, base)
    p('s_cmp_eq_u32', s_w, 0); p('s_cselect_b32', s_t0, s_t0, OOB)
    p('v_mov_b32', 'v24', s_tag)
    p('v_cmp_eq_u32', 'vcc', 0, v_lane); p('v_mov_b32', 'v25', OOB); p('v_cndmask_b32', 'v25', 'v25', 0, 'vcc')
    p('buffer_store_dword', 'v24', 'v25', srd(S_WS), s_t0, mods='offen sc1')
    return p

def k_epilogue_items(cfg, pub_delay):
    P, E, PHI = 64, 80, 112
    items = softmax_items(KA, P, E, PHI)
    p = Prog()
    def flush(d=None):
        items.extend(p.ins); p.ins = []
        if d: items.append(Delay(d))
    p('v_cvt_pk_bf16_f32', 'v24', v_rstd, v_rstd)
    p('v_lshlrev_b32', 'v25', 16, 'v24'); p('v_sub_f32', 'v25', v_rstd, 'v25')
    p('v_cvt_pk_bf16_f32', 'v24', v_rstd, 'v25')
    p('v_mov_b32', 'v25', 0); p('v_mov_b32', 'v26', 0); p('v_mov_b32', 'v27', 0)
    RT = 32; TP, TN = 64, 80
    p(MF, V(TP, 16), V(PHI, 4), A(A_E1, 4), '0');      p(MF, V(TN, 16), V(PHI+8, 4), A(A_E1, 4), '0')
    p(MF, V(RT, 16), 'v[24:27]', A(A_ONE, 4), '0')
    p(MF, V(TP, 16), V(PHI+4, 4), A(A_E2, 4), V(TP, 16)); p(MF, V(TN, 16), V(PHI+12, 4), A(A_E2, 4), V(TN, 16))
    flush(2)
    for r in range(16): p('v_mul_f32', V(VA+r), V(VA+r), V(RT+r))
    VP = 96
    for i in range(8): p('v_cvt_pk_bf16_f32', V(VP+i), V(VA+2*i), V(VA+2*i+1))
    TPK = 104
    for i in range(8): p('v_cvt_pk_bf16_f32', V(TPK+i), V(TP+2*i), V(TP+2*i+1))
    for i in range(8): p('v_cvt_pk_bf16_f32', V(TPK+8+i), V(TN+2*i), V(TN+2*i+1))
    for z, base in (('v24', TP), ('v25', TN)):
        p('v_add_f32', z, V(base), V(base+1))
        for r in range(2, 16): p('v_add_f32', z, z, V(base+r))
    DP, DN = 32, 64
    p(MF, V(DP, 16), V(TPK, 4), V(VP, 4), '0');        p(MF, V(DN, 16), V(TPK+8, 4), V(VP, 4), '0')
    p(MF, V(DP, 16), V(TPK+4, 4), V(VP+4, 4), V(DP, 16)); p(MF, V(DN, 16), V(TPK+12, 4), V(VP+4, 4), V(DN, 16))
    p('v_and_b32', 'v26', 31, v_lane); p('v_lshlrev_b32', 'v26', 4, 'v26'); p('v_add_u32', 'v26', s_reg, 'v26')
    p('v_lshlrev_b32', 'v27', 2, v_lane); p('v_add_u32', 'v27', s_reg, 'v27')
    E0 = L_E
    p('ds_write_b32', 'v27', 'v24', mods='offset:%d' % (E0+4096)); p('ds_write_b32', 'v27', 'v25', mods='offset:%d' % (E0+4096+256))
    flush(2)
    g = Prog()
    g('s_mov_b64', 'exec', S_USE)
    for q in range(4):
        g('ds_write_b128', 'v26', V(DP+4*q, 4), mods='offset:%d' % (E0 + q*512))
        g('ds_write_b128', 'v26', V(DN+4*q, 4), mods='offset:%d' % (E0 + 2048 + q*512), tag='kvw')
    g('s_mov_b64', 'exec', -1)
    items.append(Group(g.ins)); items.append(Delay(3))
    g = Prog(); g.wait_lgkm('kvw'); g('s_barrier'); items.append(Group(g.ins))
    p('v_and_b32', 'v26', 31, v_lane); p('v_lshlrev_b32', 'v26', 4, 'v26')
    p('v_mov_b32', 'v27', 2048); p('v_cndmask_b32', 'v27', 'v27', 0, S_USE)
    p('v_add_u32', 'v26', 'v26', 'v27')
    p('s_lshl_b32', s_t0, s_w, 9); p('v_add_u32', 'v26', s_t0, 'v26')
    p('v_add_u32', 'v27', E0, 'v26'); p('v_add_u32', 'v25', 2*REGION, 'v27')
    p('ds_read_b128', V(32, 4), 'v27'); p('ds_read_b128', V(36, 4), 'v27', mods='offset:%d' % REGION)
    p('ds_read_b128', V(40, 4), 'v25'); p('ds_read_b128', V(44, 4), 'v25', mods='offset:%d' % REGION)
    p('v_and_b32', 'v24', 31, v_lane); p('v_lshlrev_b32', 'v24', 2, 'v24')
    p('v_lshrrev_b32', 'v23', 5, v_lane); p('v_lshl_add_u32', 'v24', 'v23', 8, 'v24')
    p('v_add_u32', 'v24', E0+4096, 'v24'); p('v_add_u32', 'v22', 2*REGION, 'v24')
    for k, (base, off) in enumerate([('v24', 0), ('v24', 128), ('v24', REGION), ('v24', REGION+128),
                                     ('v22', 0), ('v22', 128), ('v22', REGION), ('v22', REGION+128)]):
        p('ds_read_b32', V(48+k), base, mods='offset:%d' % off)
    p('s_lshl_b32', s_t0, s_c, 4); p('s_add_u32', s_t0, s_t0, s_r); p('s_mul_i32', s_t0, s_t0, KVP_PITCH)
    p('s_add_u32', s_t0, s_t0, WS_KVP)
    p('v_and_b32', 'v22', 31, v_lane); p('v_and_b32', 'v24', 3, 'v22'); p('v_lshrrev_b32', 'v25', 3, 'v22')
    p('v_lshl_add_u32', 'v24', 'v25', 2, 'v24'); p('v_bfe_u32', 'v25', 'v22', 2, 1); p('v_lshl_add_u32', 'v24', 'v25', 5, 'v24')
    p('v_lshl_add_u32', 'v24', 'v23', 4, 'v24'); p('v_lshlrev_b32', 'v24', 2, 'v24')
    flush(1)
    for k in range(4):
        p('v_add_f32', V(32+k), V(32+k), V(36+k)); p('v_add_f32', V(40+k), V(40+k), V(44+k))
    for k in range(4): p('v_add_f32', V(32+k), V(32+k), V(40+k))
    p('buffer_store_dwordx4', V(32, 4), 'v26', srd(S_WS), s_t0, mods='offen sc1', tag='kvs')
    for k in range(4): p('v_add_f32', V(48+k), V(48+k), V(52+k))
    p('v_add_f32', V(48), V(48), V(49)); p('v_add_f32', V(50), V(50), V(51)); p('v_add_f32', V(48), V(48), V(50))
    p('s_cmp_eq_u32', s_w, 0); p('s_cselect_b32', s_t1, 4096, OOB); p('s_add_u32', s_t0, s_t0, s_t1)
    p('buffer_store_dword', V(48), 'v24', srd(S_WS), s_t0, mods='offen sc1', tag='kvs')
    flush(pub_delay)
    g = Prog(); g.wait_vm('kvs'); g('s_barrier'); g.extend(publish_ins(WS_FKV, s_c, s_r))
    items.append(Group(g.ins))
    return items

def h_epilogue(p, un):
    G, U = 128 + 16*un, 176 + 16*un
    for r in range(16):
        p('v_max_f32', V(G+r), 0, V(G+r)); p('v_mul_f32', V(U+r), V(U+r), v_r2)
    for r in range(16): p('v_mul_f32', V(G+r), V(G+r), V(U+r))
    for i in range(8): p('v_cvt_pk_bf16_f32', V(U+i), V(G+2*i), V(G+2*i+1))
    p('s_mul_i32', s_t0, s_tb, 86); p('s_add_u32', s_t1, s_u0, un); p('s_lshl_b32', s_t1, s_t1, 1)
    p('s_add_u32', s_t0, s_t0, s_t1); p('s_lshl_b32', s_t0, s_t0, 10); p('s_add_u32', s_t0, s_t0, WS_H)
    if un == 2:
        p('s_cmp_lt_u32', s_nu, 3); p('s_cselect_b32', s_t0, OOB, s_t0)
    p('buffer_store_dwordx4', V(U, 4), v_l16, srd(S_WS), s_t0, mods='offen sc1', tag='hs')
    p('buffer_store_dwordx4', V(U+4, 4), v_l16, srd(S_WS), s_t0, mods='offen offset:1024 sc1', tag='hs')

uid = [0]
def poll(p, base, s_line):
    uid[0] += 1
    L = 'L_poll%d' % uid[0]
    p('s_lshl_b32', s_t0, s_line, 7); p('s_add_u32', s_t0, s_t0, base)
    p('v_and_b32', 'v24', 15, v_lane); p('v_lshlrev_b32', 'v24', 2, 'v24')
    p('s_mov_b32', s_cnt, 20000)
    txt = f"""{L}:
  buffer_load_dword v25, v24, {srd(S_WS)}, {s_t0} offen sc1
  s_waitcnt vmcnt(0)
  v_cmp_ne_u32 vcc, {s_tag}, v25
  s_nop 4
  s_cbranch_vccz {L}_done
  s_sub_u32 {s_cnt}, {s_cnt}, 1
  s_cmp_eq_u32 {s_cnt}, 0
  s_cbranch_scc1 {L}_done
  s_sleep 1
  s_branch {L}
{L}_done:"""
    p.raw(txt.lstrip(), drains_vm=True, defs=['v25', 'vcc', s_cnt], uses=['v24', s_t0, s_tag], states=8)

def poll_issue(p, base, s_line, vreg, tag):
    p('s_lshl_b32', s_t0, s_line, 7); p('s_add_u32', s_t0, s_t0, base)
    p('v_and_b32', 'v24', 15, v_lane); p('v_lshlrev_b32', 'v24', 2, 'v24')
    p('buffer_load_dword', vreg, 'v24', srd(S_WS), s_t0, mods='offen sc1', tag=tag)
def poll_check(p, base, s_line, vreg):
    uid[0] += 1
    L = 'L_poll%d' % uid[0]
    p('v_cmp_ne_u32', 'vcc', s_tag, vreg)
    p('s_lshl_b32', s_t0, s_line, 7); p('s_add_u32', s_t0, s_t0, base)
    p('v_and_b32', 'v24', 15, v_lane); p('v_lshlrev_b32', 'v24', 2, 'v24')
    p('s_mov_b32', s_cnt, 20000)
    txt = f"""s_cbranch_vccz {L}_done
{L}:
  buffer_load_dword {vreg}, v24, {srd(S_WS)}, {s_t0} offen sc1
  s_waitcnt vmcnt(0)
  v_cmp_ne_u32 vcc, {s_tag}, {vreg}
  s_nop 4
  s_cbranch_vccz {L}_done
  s_sub_u32 {s_cnt}, {s_cnt}, 1
  s_cmp_eq_u32 {s_cnt}, 0
  s_cbranch_scc1 {L}_done
  s_sleep 1
  s_branch {L}
{L}_done:"""
    p.raw(txt, drains_vm=False, defs=[vreg, 'vcc', s_cnt], uses=['v24', s_t0, s_tag, 'vcc'], states=1)

def touch_p2w(p):
    p('s_mul_i32', s_t0, 's2', 43*128); p('s_mul_i32', s_t1, 's2', 16*128)
    p('s_cmp_eq_u32', s_w, 0); p('s_cselect_b32', s_t0, s_t0, OOB)
    p('s_cmp_eq_u32', s_w, 1); p('s_cselect_b32', s_t1, s_t1, OOB)
    p('v_lshlrev_b32', 'v24', 7, v_lane)
    p('v_cmp_gt_u32', 'vcc', 43, v_lane); p('v_mov_b32', 'v25', OOB); p('v_cndmask_b32', 'v25', 'v25', 'v24', 'vcc')
    p('buffer_load_dword', 'a60', 'v25', srd(S_WD), s_t0, mods='offen')
    p('v_cmp_gt_u32', 'vcc', 16, v_lane); p('v_mov_b32', 'v25', OOB); p('v_cndmask_b32', 'v25', 'v25', 'v24', 'vcc')
    p('buffer_load_dword', 'a61', 'v25', srd(S_WO), s_t0.replace(s_t0, s_t1), mods='offen')

G0 = 128
def gather_setup(p):
    p('v_and_b32', 'v26', 31, v_lane); p('v_lshlrev_b32', 'v26', 4, 'v26')
    p('v_mov_b32', 'v27', 2048); p('v_cndmask_b32', 'v27', 'v27', 0, S_USE)
    p('v_add_u32', 'v26', 'v26', 'v27')
    p('s_lshl_b32', s_t0, s_w, 9); p('v_add_u32', 'v28', s_t0, 'v26')
    p('v_lshlrev_b32', 'v29', 2, v_lane); p('v_add_u32', 'v29', 4096, 'v29')
    p('s_lshl_b32', s_t0, s_c, 4); p('s_mul_i32', s_ao, s_t0, KVP_PITCH); p('s_add_u32', s_ao, s_ao, WS_KVP)
    p('s_mul_i32', s_t0, s_w, 4*KVP_PITCH); p('s_add_u32', s_cnt, s_ao, s_t0)
def gather_pieces():
    out = []
    for k in range(4):
        p = Prog()
        p('buffer_load_dword', V(G0+64+k), 'v29', srd(S_WS), s_cnt, mods='offen sc1')
        if k < 3: p('s_add_u32', s_cnt, s_cnt, KVP_PITCH)
        out.append(p)
    for r in range(16):
        p = Prog()
        p('buffer_load_dwordx4', V(G0+4*r, 4), 'v28', srd(S_WS), s_ao, mods='offen sc1')
        if r < 15: p('s_add_u32', s_ao, s_ao, KVP_PITCH)
        out.append(p)
    return out

def o_phase(p, cfg, PHQ, pre_bar, post_bar, pre_store):
    for k in range(1, 4): p('v_add_f32', V(G0+64), V(G0+64), V(G0+64+k))
    for r in range(1, 16):
        for k in range(4): p('v_add_f32', V(G0+k), V(G0+k), V(G0+4*r+k))
    E0 = L_Q
    p('v_add_u32', 'v25', s_reg, v_l16)
    p('ds_write_b128', 'v25', V(G0, 4), mods='offset:%d' % E0)
    p('v_lshlrev_b32', 'v27', 2, v_lane); p('v_add_u32', 'v27', s_reg, 'v27')
    p('ds_write_b32', 'v27', V(G0+64), mods='offset:%d' % (E0+4096))
    p.wait_all(vm=False)
    p.extend(pre_bar)
    p('s_barrier')
    p.extend(post_bar)
    M = 32
    p('v_add_u32', 'v25', E0, v_l16); p('v_add_u32', 'v24', 2*REGION, 'v25')
    p('ds_read_b128', V(M, 4), 'v25'); p('ds_read_b128', V(M+4, 4), 'v25', mods='offset:%d' % REGION)
    p('ds_read_b128', V(M+8, 4), 'v24'); p('ds_read_b128', V(M+12, 4), 'v24', mods='offset:%d' % REGION)
    p('v_lshlrev_b32', 'v27', 2, v_lane); p('v_add_u32', 'v27', E0+4096, 'v27'); p('v_add_u32', 'v26', 2*REGION, 'v27')
    p('ds_read_b32', 'v20', 'v27'); p('ds_read_b32', 'v21', 'v27', mods='offset:%d' % REGION)
    p('ds_read_b32', 'v22', 'v26'); p('ds_read_b32', 'v23', 'v26', mods='offset:%d' % REGION)
    PK = 48
    for i in range(8): p('v_cvt_pk_bf16_f32', V(PK+i), V(M+2*i), V(M+2*i+1))
    p('v_add_f32', 'v20', 'v20', 'v21'); p('v_add_f32', 'v22', 'v22', 'v23'); p('v_add_f32', 'v20', 'v20', 'v22')
    p('v_lshlrev_b32', 'v27', 2, v_lane); p('v_add_u32', 'v27', s_reg, 'v27')
    p('ds_write_b32', 'v27', 'v20', mods='offset:%d' % (E0+5120))
    p('v_lshrrev_b32', 'v27', 5, v_lane); p('v_lshlrev_b32', 'v27', 7, 'v27'); p('v_add_u32', 'v27', s_reg, 'v27')
    Z = 64
    for k in range(8): p('ds_read_b128', V(Z+4*k, 4), 'v27', mods='offset:%d' % (E0+5120+16*k))
    AP, AN = 96, 104
    for i in range(8):
        p('v_cndmask_b32', V(AP+i), 0, V(PK+i), S_USE); p('v_mov_b32', V(56+i), V(PK+i))
    for i in range(8): p('v_permlane32_swap_b32', V(PK+i), V(56+i))
    for i in range(8):
        p('v_cndmask_b32', V(PK+i), V(56+i), V(PK+i), S_HI); p('v_cndmask_b32', V(AN+i), 0, V(PK+i), S_USE)
    NUM = 208
    p(MF, V(NUM, 16), V(AP, 4), V(PHQ, 4), '0')
    p(MF, V(NUM, 16), V(AP+4, 4), V(PHQ+4, 4), V(NUM, 16))
    p(MF, V(NUM, 16), V(AN, 4), V(PHQ+8, 4), V(NUM, 16))
    p(MF, V(NUM, 16), V(AN+4, 4), V(PHQ+12, 4), V(NUM, 16))
    ZP = 32
    for i in range(16): p('v_cvt_pk_bf16_f32', V(ZP+i), V(Z+2*i), V(Z+2*i+1))
    p('v_mov_b32', 'v24', '0x358637bd')
    for i in range(16): p('v_dot2c_f32_bf16', 'v24', V(ZP+i), V(PHQ+i))
    p('v_mov_b32', 'v25', 'v24')
    p('v_permlane32_swap_b32', 'v24', 'v25')
    p('v_rcp_f32', 'v24', 'v24'); p('v_rcp_f32', 'v25', 'v25')
    for r in range(16): p('v_mul_f32', V(NUM+r), V(NUM+r), 'v24' if r < 8 else 'v25')
    for i in range(8): p('v_cvt_pk_bf16_f32', V(80+i), V(NUM+2*i), V(NUM+2*i+1))
    p.extend(pre_store)
    p('s_lshl_b32', s_t0, s_tb, 5); p('s_lshl_b32', s_t1, s_c, 1); p('s_add_u32', s_t0, s_t0, s_t1)
    p('s_lshl_b32', s_t0, s_t0, 10); p('s_add_u32', s_t0, s_t0, WS_O)
    p('buffer_store_dwordx4', V(80, 4), v_l16, srd(S_WS), s_t0, mods='offen sc1', tag='os')
    p('buffer_store_dwordx4', V(84, 4), v_l16, srd(S_WS), s_t0, mods='offen offset:1024 sc1', tag='os')

NST = 60; NDN = 44
def p2_slot(n):
    r = n % 40
    if r < 4: return L_VQ + r*2048
    if r < 8: return REGION + L_VQ + (r-4)*2048
    if r < 12: return L_E + (r-8)*2048
    if r < 16: return REGION + L_E + (r-12)*2048
    if r < 24: return 8192 + (r-16)*2048
    if r < 32: return REGION + 8192 + (r-24)*2048
    if r < 36: return (r-32)*2048
    return REGION + (r-36)*2048
vd = 'v12'; vr = [['v6', 'v7'], ['v8', 'v9']]; v_xo = 'v10'
SGA = ['s%d' % x for x in (28, 29, 30, 31, 70, 71, 72, 73, 74, 75, 76, 77, 3, 4, 5)]
def p2_setup(p, cfg):
    p('s_lshr_b32', s_t0, s_w, 1); p('s_and_b32', s_t1, s_w, 1)
    p('s_lshl_b32', s_t2, s_i, 1); p('s_add_u32', s_t2, s_t2, s_t1)
    p('s_mul_i32', s_t3, s_t0, 43)
    p('s_mul_i32', s_a1, s_t2, 86); p('s_add_u32', s_a1, s_a1, s_t3); p('s_lshl_b32', s_a1, s_a1, 10); p('s_add_u32', s_a1, s_a1, WS_H)
    p('s_lshl_b32', s_a2, s_t2, 5); p('s_lshl_b32', s_d0, s_t0, 4); p('s_add_u32', s_a2, s_a2, s_d0)
    p('s_lshl_b32', s_a2, s_a2, 10); p('s_add_u32', s_a2, s_a2, WS_O)
    p('s_lshl_b32', s_w1, s_j, 7); p('s_lshl_b32', s_d1, s_t1, 13); p('s_add_u32', s_w1, s_w1, s_d1)
    p('s_lshl_b32', s_d0, s_d0, 14); p('s_add_u32', s_w2, s_w1, s_d0)
    p('s_lshl_b32', s_t3, s_t3, 14); p('s_add_u32', s_w1, s_w1, s_t3)
    p('s_mul_i32', s_pb, s_t0, 2*REGION)
    p('s_lshl_b32', s_e0, s_t2, 15); p('s_lshl_b32', s_d0, s_j, 7); p('s_add_u32', s_e0, s_e0, s_d0)
    p('s_lshl_b32', s_d0, s_t0, 6); p('s_add_u32', s_e0, s_e0, s_d0)
    p('v_lshrrev_b32', 'v17', 3, v_lane); p('v_bfe_u32', 'v18', 'v17', 1, 1); p('v_lshlrev_b32', 'v18', 2, 'v18')
    p('v_and_b32', 'v19', 7, v_lane); p('v_xor_b32', 'v18', 'v18', 'v19'); p('v_lshlrev_b32', 'v18', 4, 'v18')
    p('v_lshl_add_u32', vd, 'v17', 10, 'v18')
    p('s_lshl_b32', s_t1, s_t1, 10); p('s_add_u32', s_pb, s_pb, s_t1)
    p('s_and_b32', s_t0, s_i, 3); p('s_mul_i32', s_t0, s_t0, 3); p('s_add_u32', s_t0, s_t0, s_j)
    p('s_lshr_b32', s_t1, s_i, 2); p('s_add_u32', s_t0, s_t0, s_t1)
    if not cfg.rot2: p('s_mov_b32', s_t0, 0)
    for _ in range(2):
        p('s_cmp_ge_u32', s_t0, 11); p('s_cselect_b32', s_t1, 11, 0); p('s_sub_u32', s_t0, s_t0, s_t1)
    for g in range(11):
        p('s_lshl_b32', SGA[g], s_t0, 12)
        if g < 10:
            p('s_add_u32', s_t0, s_t0, 1); p('s_cmp_eq_u32', s_t0, 11); p('s_cselect_b32', s_t0, 0, s_t0)
    p('s_add_u32', s_t0, s_i, s_j)
    if not cfg.rot2: p('s_mov_b32', s_t0, 0)
    for g in range(4):
        p('s_add_u32', s_t1, s_t0, g); p('s_and_b32', s_t1, s_t1, 3); p('s_lshl_b32', SGA[11+g], s_t1, 12)
def p2_setup_late(p):
    p('v_and_b32', 'v17', 15, v_lane); p('v_lshrrev_b32', 'v18', 2, 'v17')
    p('v_lshrrev_b32', 'v19', 5, v_lane); p('v_lshl_add_u32', 'v18', 'v19', 2, 'v18'); p('v_lshlrev_b32', 'v18', 7, 'v18')
    p('v_bfe_u32', 'v19', v_lane, 4, 1); p('v_lshl_add_u32', 'v18', 'v19', 5, 'v18')
    p('v_and_b32', 'v19', 3, v_lane); p('v_lshl_add_u32', 'v18', 'v19', 3, 'v18')
    p('s_lshr_b32', s_t0, s_w, 1); p('s_mul_i32', s_t1, s_t0, 2*REGION); p('v_add_u32', 'v18', s_t1, 'v18')
    p('v_bfe_u32', 'v19', 'v17', 3, 1); p('v_xor_b32', 'v19', s_t0, 'v19')
    p('v_lshl_add_u32', vr[0][0], 'v19', 6, 'v18'); p('v_add_u32', vr[0][1], 65536, vr[0][0])
    p('v_xor_b32', 'v19', 1, 'v19'); p('v_lshl_add_u32', vr[1][0], 'v19', 6, 'v18'); p('v_add_u32', vr[1][1], 65536, vr[1][0])
    p('v_and_b32', 'v17', 31, v_lane); p('v_lshlrev_b32', 'v17', 10, 'v17')
    p('v_lshrrev_b32', 'v18', 5, v_lane); p('v_lshl_add_u32', v_xo, 'v18', 3, 'v17')
def p2_wdma(n):
    p = Prog()
    g = n // 4
    p('s_add_u32', 'm0', s_pb, p2_slot(n))
    p('s_lshl_b32', s_d1, SGA[g], 4)
    p('s_add_u32', s_d1, s_d1, s_w1 if n < NDN else s_w2)
    if n & 3: p('s_add_u32', s_d1, s_d1, (n & 3)*16384)
    p('buffer_load_dwordx4', vd, srd(S_WD if n < NDN else S_WO), s_d1, mods='offen lds', tag='pw%d' % n)
    return p

def p2_main(p, cfg, issued):
    LA = cfg.p2_la; AB = 128; NA = 16
    XR = 208
    poll_check(p, WS_FH, s_fr, 'v30')
    stamp(p, cfg, 'h_poll')
    def aload(pp, n):
        g = n // 4
        if n == NDN:
            poll_check(pp, WS_FO, s_fr, 'v31')
            pp('s_or_b32', s_t0, 's2', s_w); pp('s_cmp_eq_u32', s_t0, 0); pp('s_cselect_b32', s_t0, WS_TAG, OOB)
            pp('v_mov_b32', 'v24', s_tag)
            pp('v_cmp_eq_u32', 'vcc', 0, v_lane); pp('v_mov_b32', 'v25', OOB); pp('v_cndmask_b32', 'v25', 'v25', 0, 'vcc')
            pp('buffer_store_dword', 'v24', 'v25', srd(S_WS), s_t0, mods='offen sc1')
        if n == NDN - cfg.fo_early: poll_issue(pp, WS_FO, s_fr, 'v31', 'fo')
        if n % 4 == 0:
            pp('s_add_u32', s_ao, s_a1 if n < NDN else s_a2, SGA[g])
        so = s_ao
        if n % 4 == 3 and n < NDN:
            pp('s_cmp_eq_u32', SGA[g], 10*4096); pp('s_cselect_b32', s_cnt, OOB, s_ao); so = s_cnt
        pp('buffer_load_dwordx4', V(AB + 4*(n % NA), 4), v_l16, srd(S_WS), so, mods='offen offset:%d %s' % ((n % 4)*1024, 'sc1' if cfg.a_sc1 else ''))
    def wread(pp, n):
        if n % 4 == 0:
            pp.wait_vm('pw%d' % min(n+3, NST-1))
            if n == cfg.o_pub: pp.wait_vm('os')
            pp('s_barrier')
            if n == cfg.o_pub: pp.extend(publish_ins(WS_FO, s_r, s_c))
        b = A_W + 8*(n % 3); a0 = p2_slot(n)
        for idx in range(2):
            for rho in range(2):
                a = a0 + rho*1024
                pp('ds_read_b64_tr_b16', A(b + 4*idx + 2*rho, 2), vr[idx][a >> 16], mods='offset:%d' % (a & 0xffff))
    todo = [n for n in range(NST) if n not in issued]
    for n in range(4): aload(p, n)
    for g in range(4):
        p('buffer_load_dwordx2', V(XR+2*g, 2), v_xo, srd(S_X), s_e0, mods='offen offset:%d' % (16*g))
    for n in range(4, LA): aload(p, n)
    wread(p, 0); wread(p, 1)
    for n in range(NST):
        if cfg.fine and n in (0, 4, 8, 16, 24, 32, 40, 48, 56): stamp(p, cfg, 'p2s%d' % n)
        if n + LA < NST: aload(p, n + LA)
        wb = A_W + 8*(n % 3); ab = V(AB + 4*(n % NA), 4)
        acc = 32 if n < NDN else 64
        first = n in (0, NDN)
        p(MF, V(acc, 16), A(wb, 4), ab, '0' if first else V(acc, 16))
        if n + 2 < NST: wread(p, n+2)
        p(MF, V(acc+16, 16), A(wb+4, 4), ab, '0' if first else V(acc+16, 16))
        if todo and (todo[0] < 40 or todo[0] - 40 <= n - 6): p.extend(p2_wdma(todo.pop(0)))
    stamp(p, cfg, 'p2_loop')
    p.wait_all()
    p('s_barrier')
    p('v_add_u32', 'v17', s_reg, v_l16)
    for t, base in enumerate((48, 80)):
        for q in range(4): p('ds_write_b128', 'v17', V(base+4*q, 4), mods='offset:%d' % (t*4096 + q*1024))
    p('s_xor_b32', s_t0, s_w, 2); p('s_mul_i32', s_t0, s_t0, REGION); p('v_add_u32', 'v18', s_t0, v_l16)
    p.wait_all()
    p('s_barrier')
    RA, RB = 96, 112
    for t, base in enumerate((RA, RB)):
        for q in range(4): p('ds_read_b128', V(base+4*q, 4), 'v18', mods='offset:%d' % (t*4096 + q*1024))
    XU = 48
    for g in range(4):
        for k in range(2):
            p('v_lshlrev_b32', V(XU+4*g+2*k), 16, V(XR+2*g+k)); p('v_and_b32', V(XU+4*g+2*k+1), '0xffff0000', V(XR+2*g+k))
    Dn, T = 32, 128
    for r in range(16): p('v_add_f32', V(Dn+r), V(Dn+r), V(RA+r))
    for r in range(16): p('v_mul_f32', V(T+r), '0xbfb8aa3b', V(Dn+r))
    for r in range(16): p('v_exp_f32', V(T+r), V(T+r))
    for r in range(16): p('v_add_f32', V(64+r), V(64+r), V(RB+r))
    for r in range(16): p('v_add_f32', V(T+r), 1.0, V(T+r))
    for r in range(16): p('v_rcp_f32', V(T+r), V(T+r))
    for r in range(16): p('v_mul_f32', V(Dn+r), V(Dn+r), V(64+r))
    for r in range(16): p('v_fma_f32', V(T+r), V(Dn+r), V(T+r), V(XU+r))
    for i in range(8): p('v_cvt_pk_bf16_f32', V(64+i), V(T+2*i), V(T+2*i+1))
    for g in range(4):
        p('buffer_store_dwordx2', V(64+2*g, 2), v_xo, srd(S_OUT), s_e0, mods='offen offset:%d' % (16*g))

def build(cfg):
    p = Prog()
    cfg.nst = 0; cfg.names = []
    prologue(p, cfg)
    stamp(p, cfg, 'rt0', real=True); stamp(p, cfg, 'start')
    x_phase(p, cfg)
    p.wait_all(vm=False)
    stamp(p, cfg, 'xstats')
    p('s_add_u32', s_tag, s_tag, TAG_INC)
    ln_finish(p)
    ph = Prog(); phi_loads(ph)
    cp = []
    for i in range(8): cp += [qkv_piece('v', i, L_VQ, 'wv'), Prog()]
    cp[15] = ph
    center(p, cp)
    stamp(p, cfg, 'centered')
    if cfg.stop == 'xc':
        dump_regs(p, cfg, [A(XA+i) for i in range(128)] + [v_rstd], 0); p('s_branch', 'L_end'); return fin(p, cfg)
    order = [(0,0),(0,1),(0,2),(1,0),(1,1),(1,2)]
    seq = [('k', s) for s in range(32)] + [('v', s) for s in range(32)] + [(m, u, s) for s in range(32) for (m, u) in order]
    def rd(pp, it, buf, tag):
        if it[0] == 'k': rd64(pp, it[1], L_E, buf, tag)
        elif it[0] == 'v': rd64(pp, it[1], L_VQ, buf, tag)
        else: rdgu(pp, it[0], it[1], it[2], buf, tag)
    def mf(pp, it, buf):
        w = A(A_W+4*buf, 4)
        if it[0] == 'k':
            acc = V(KA, 16); pp(MF, acc, w, xa(it[1]), '0' if it[1] == 0 else acc)
        elif it[0] == 'v':
            acc = V(VA, 16); pp(MF, acc, xa(it[1]), w, '0' if it[1] == 0 else acc)
        else:
            m, u, s = it; acc = V(128 + 48*m + 16*u, 16)
            pp(MF, acc, w, xa(s), '0' if s == 0 else acc)
    G = 64
    pre = {0: bar('wk'), 32: bar('wv')}
    for j in range(8): pre[G + 24*j] = bar('gu%d' % j)
    head, slots = make_slots(seq, rd, mf, pre)
    dist = 4
    spread(slots, gu_pieces(0) + gu_pieces(1) + gu_pieces(2), 0, 58)
    spread(slots, gu_pieces(3), G + 0, G + 18)
    for j in range(2, 6):
        spread(slots, gu_pieces(j+2), G + 24*j - dist + 1, G + 24*j + 16)
    issued = set()
    if cfg.p2early:
        spread(slots, [p2_wdma(n) for n in range(0, 8)], G + 24 + 2, G + 24 + 22); issued |= set(range(8))
    qp = [qkv_piece('q', i, L_Q, 'wq') for i in range(8)]
    spread(slots, qp[:6], G + 24*6 - dist + 1, G + 24*6 + 14)
    spread(slots, qp[6:], G + 24*7 - dist + 1, G + 24*7 + 4)
    f1 = Prog(); phi_pack(f1); p2_setup(f1, cfg)
    items = k_epilogue_items(cfg, cfg.pub_delay)
    if cfg.touch:
        t = Prog(); touch_p2w(t); f1.extend(t)
    p.extend(head)
    if cfg.interleave:
        p.extend(merge(slots[:30], f1.ins, start=1))
        nend = len(slots) - cfg.gu_tail
        late = []
        if cfg.p2early:
            items_post = [p2_wdma(n) for n in range(8, 16)]; issued |= set(range(8, 16))
            k = max(i for i, it in enumerate(items) if isinstance(it, Delay))
            items = items[:k] + [Delay(4)] + [Group(bar(None).ins)] + sum([[Group(pc.ins), Delay(2)] for pc in items_post], []) + [Delay(max(1, cfg.pub_delay - 28))] + items[k+1:]
        p.extend(merge(slots[30:nend], items, start=4))
        for sl in slots[nend:]: p.extend(sl)
    else:
        p.extend(f1); p.extend(flat(items))
        for sl in slots: p.extend(sl)
    stamp(p, cfg, 'gu_pass')
    for un in range(3): h_epilogue(p, un)
    stamp(p, cfg, 'h_epi')
    p2_setup_late(p)
    seq = [('q', s) for s in range(32)]
    def rd(pp, it, buf, tag): rd64(pp, it[1], L_Q, buf, tag)
    def mf(pp, it, buf):
        s = it[1]; acc = V(32, 16)
        pp(MF, acc, A(A_W+4*buf, 4), xa(s), '0' if s == 0 else acc)
    head, slots = make_slots(seq, rd, mf, {0: bar('wq')})
    rest = [n for n in range(32) if n not in issued]
    inq = rest[:cfg.pre1]; rest = rest[cfg.pre1:]
    if inq: spread(slots, [p2_wdma(n) for n in inq], 0, 31)
    issued |= set(range(32))
    e = Prog(); poll_issue(e, WS_FKV, s_c, 'v30', 'fkv'); slots[cfg.kv_early].extend(e)
    p.extend(head)
    for sl in slots: p.extend(sl)
    stamp(p, cfg, 'q_pass')
    p.wait_vm('hs'); p('s_barrier'); p.extend(publish_ins(WS_FH, s_r, s_c))
    poll_check(p, WS_FKV, s_c, 'v30')
    stamp(p, cfg, 'kv_poll')
    gather_setup(p)
    PHQ = 112
    q = flat(softmax_items(32, 48, 64, PHQ))
    pieces = gather_pieces() + [p2_wdma(n) for n in rest]
    step = max(1, len(q.ins)//len(pieces))
    for k, ins in enumerate(q.ins):
        p.add(ins)
        if k % step == step-1 and pieces: p.extend(pieces.pop(0))
    for pc in pieces: p.extend(pc)
    stamp(p, cfg, 'q_epi')
    if cfg.stop == 'q':
        dump_regs(p, cfg, [V(PHQ+i) for i in range(16)], 0); p('s_branch', 'L_end'); return fin(p, cfg)
    e = Prog(); poll_issue(e, WS_FH, s_fr, 'v30', 'fh')
    o_phase(p, cfg, PHQ, Prog(), Prog(), e)
    if cfg.stop == 'o':
        p.wait_vm('os'); p('s_barrier'); p.extend(publish_ins(WS_FO, s_r, s_c))
    stamp(p, cfg, 'o_done')
    if cfg.stop == 'o':
        p.wait_all(); p('s_branch', 'L_end'); return fin(p, cfg)
    p2_main(p, cfg, issued)
    return fin(p, cfg)

def fin(p, cfg):
    if cfg.stamps:
        p.wait_all()
        stamp(p, cfg, 'end'); stamp(p, cfg, 'rt1', real=True)
        stamp_out(p, cfg)
    p.label('L_end')
    p('s_endpgm')
    ins, stats = finalize(p)
    last = None
    for i in ins:
        if i.kind == 'raw': last = None; continue
        if ('scc', 0) in i.uses and i.op not in ('s_branch',):
            assert last is not None and last.op.startswith('s_cmp'), (last, i)
        if ('scc', 0) in i.defs and i.op != 's_mul_i32': last = i
    body = render(ins)
    head = open(os.path.join(os.path.dirname(os.path.abspath(__file__)), '..', 'cdna_kernels', NAME + '.s.ref')).read()
    hdr = head[:head.index('; Override launch geometry')]
    hdr += '; Generated by gen/gen2.py (hand-written generator). One persistent workgroup per CU.\n'
    hdr += '; @launch grid=(256,1,1) block=(256,1,1) lds=163840\n'
    txt = hdr + '.amdgcn_target "amdgcn-amd-amdhsa--gfx950"\n.text\n.globl %s\n.p2align 8\n.type %s,@function\n%s:\n' % (KNAME, KNAME, KNAME)
    if cfg.cpf:
        body = 'L_code0:\n' + body
    txt += body
    txt += """.section .rodata,"a"
.p2align 6
.amdhsa_kernel %s
  .amdhsa_next_free_vgpr 512
  .amdhsa_next_free_sgpr 102
  .amdhsa_accum_offset 256
  .amdhsa_group_segment_fixed_size 0
  .amdhsa_kernarg_size 88
  .amdhsa_user_sgpr_count 2
  .amdhsa_user_sgpr_kernarg_segment_ptr 1
  .amdhsa_system_sgpr_workgroup_id_x 1
  .amdhsa_float_denorm_mode_32 3
.end_amdhsa_kernel
""" % KNAME
    return txt, stats

if __name__ == '__main__':
    import argparse
    ap = argparse.ArgumentParser()
    ap.add_argument('-o', default=None); ap.add_argument('--stop', default=None); ap.add_argument('--dbg', action='store_true')
    ap.add_argument('--stamps', action='store_true'); ap.add_argument('--set', action='append', default=[])
    a = ap.parse_args()
    cfg = Cfg(); cfg.stop = a.stop; cfg.dbg = a.dbg or a.stamps or (a.stop is not None); cfg.stamps = a.stamps
    cfg.rot = True; cfg.pub_delay = 40; cfg.p2_la = 12; cfg.pre1 = 4; cfg.gu_tail = 20; cfg.rot2 = 1; cfg.touch = 1; cfg.kv_early = 24; cfg.fo_early = 4; cfg.o_pub = 8; cfg.a_sc1 = 1; cfg.fine = 0; cfg.p2early = 1; cfg.cpf = 1; cfg.cpf_wave = 3; cfg.cpf_n = 9
    for kv in a.set:
        k, v = kv.split('='); setattr(cfg, k, int(v))
    txt, stats = build(cfg)
    out = a.o or os.path.join(os.path.dirname(os.path.abspath(__file__)), '..', 'cdna_kernels', NAME + '.s')
    open(out, 'w').write(txt)
    print(out, stats, len(txt), 'bytes')
    if cfg.stamps: open(out + '.names', 'w').write(' '.join(cfg.names))
```
